```python
import torch

def _softmax(x, axis=-1):
    return torch.softmax(x, dim=axis)
def _gelu(x):
    return torch.nn.functional.gelu(x, approximate="tanh")
def _silu(x):
    return torch.nn.functional.silu(x)
def _sigmoid(x):
    return torch.sigmoid(x)
def _layernorm(x, axis=-1, eps=1e-5):
    m = x.mean(dim=axis, keepdim=True)
    v = x.var(dim=axis, keepdim=True, unbiased=False)
    return (x - m) / torch.sqrt(v + eps)
def _scatter_add(tgt, idx, src, axis=0):
    return tgt.clone().index_add_(axis, idx, src)
def _segment_sum(src, seg, n):
    out = torch.zeros((n,) + src.shape[1:], dtype=src.dtype)
    return out.index_add_(0, seg, src)
def _pad(x, pw):
    flat = tuple(v for pair in reversed(pw) for v in pair)
    return torch.nn.functional.pad(x, flat)

kernel_name = 'parallel_sum__ssm_conv_s5__geglu_ffn__prompt'

def setup_inputs():

    _w = (lambda a: (lambda t: t.to(torch.bfloat16) if t.is_floating_point() else t)(torch.as_tensor(a)))
    def _A_setup():
        B, S, D = 1, 2048, 512
        P = D
        Lambda_re = -0.5 * (lambda _x: torch.exp(torch.as_tensor(_x)))((lambda *s: torch.randn(*s, dtype=torch.bfloat16) * 0.8)(P))
        Lambda_im = (lambda *s: torch.randn(*s, dtype=torch.bfloat16) * 0.8)(P) * 1.0
        B_re = (lambda *s: torch.randn(*s, dtype=torch.bfloat16) * 0.8)(P, D) * (D ** -0.5)
        B_im = (lambda *s: torch.randn(*s, dtype=torch.bfloat16) * 0.8)(P, D) * (D ** -0.5)
        C_re = (lambda *s: torch.randn(*s, dtype=torch.bfloat16) * 0.8)(D, P) * (P ** -0.5)
        C_im = (lambda *s: torch.randn(*s, dtype=torch.bfloat16) * 0.8)(D, P) * (P ** -0.5)
        log_dt = (lambda *s: torch.randn(*s, dtype=torch.bfloat16) * 0.8)(P) * 0.3 - 2.0
        Dskip = (lambda *s: torch.randn(*s, dtype=torch.bfloat16) * 0.8)(D)
        return {
            "x": _w((lambda *s: torch.randn(*s, dtype=torch.bfloat16) * 0.05)(B, S, D)),
            "Lambda_re": _w(Lambda_re),
            "Lambda_im": _w(Lambda_im),
            "B_re": _w(B_re),
            "B_im": _w(B_im),
            "C_re": _w(C_re),
            "C_im": _w(C_im),
            "log_dt": _w(log_dt),
            "Dskip": _w(Dskip),
        }
    _A_in = _A_setup()

    def _B_setup():
        B, S, D, F = 1, 2048, 512, 1376
        return {
            "x": _w((lambda *s: torch.randn(*s, dtype=torch.bfloat16) * 0.05)(B, S, D)),
            "w_gate": _w((lambda *s: torch.randn(*s, dtype=torch.bfloat16) * 0.05)(D, F)),
            "w_up": _w((lambda *s: torch.randn(*s, dtype=torch.bfloat16) * 0.05)(D, F)),
            "w_down": _w((lambda *s: torch.randn(*s, dtype=torch.bfloat16) * 0.05)(F, D)),
        }
    _B_in = _B_setup()

    return {
        "A_x": _A_in["x"],
        "A_Lambda_re": _A_in["Lambda_re"],
        "A_Lambda_im": _A_in["Lambda_im"],
        "A_B_re": _A_in["B_re"],
        "A_B_im": _A_in["B_im"],
        "A_C_re": _A_in["C_re"],
        "A_C_im": _A_in["C_im"],
        "A_log_dt": _A_in["log_dt"],
        "A_Dskip": _A_in["Dskip"],
        "B_x": _B_in["x"],
        "B_w_gate": _B_in["w_gate"],
        "B_w_up": _B_in["w_up"],
        "B_w_down": _B_in["w_down"],
    }

def reference(A_x, A_Lambda_re, A_Lambda_im, A_B_re, A_B_im, A_C_re, A_C_im, A_log_dt, A_Dskip, B_x, B_w_gate, B_w_up, B_w_down):
    def _A_ref(x, Lambda_re, Lambda_im, B_re, B_im, C_re, C_im, log_dt, Dskip):
        Bsz, L, H = x.shape
        Lam = Lambda_re + 1j * Lambda_im
        Bmat = B_re + 1j * B_im
        Cmat = C_re + 1j * C_im
        dt = torch.exp(log_dt)
        Lam_bar = torch.exp(dt * Lam)
        B_bar = ((Lam_bar - 1.0) / Lam)[:, None] * Bmat
        Bu = torch.einsum("bld,pd->blp", x + 0j, B_bar)
        h = torch.zeros_like(Bu[:, 0, :])
        hs = []
        for t in range(L):
            h = Lam_bar[None, :] * h + Bu[:, t, :]
            hs.append(h)
        hseq = torch.stack(hs, 1)
        y = 2.0 * torch.einsum("blp,dp->bld", hseq, Cmat).real + x * Dskip[None, None, :]
        return y

    def _B_ref(x, w_gate, w_up, w_down):
        return (_gelu(x @ w_gate) * (x @ w_up)) @ w_down

    x = A_x
    xn = _layernorm(x, axis=-1)
    return x + _A_ref(xn, A_Lambda_re, A_Lambda_im, A_B_re, A_B_im, A_C_re, A_C_im, A_log_dt, A_Dskip) + _B_ref(xn, B_w_gate, B_w_up, B_w_down)
```

```python
import re

RE_REG = re.compile(r'^(-|\|)?(abs\()?([vas])(\d+|\[(\d+):(\d+)\])\)?\|?$')


def regs_of(tok):
    tok = tok.strip()
    if tok == 'vcc':
        return {'vcc'}
    if tok == 'exec':
        return {'exec'}
    if tok == 'm0':
        return {'m0'}
    m = RE_REG.match(tok)
    if not m:
        return set()
    f = m.group(3)
    if m.group(5) is not None:
        return {f + str(i) for i in range(int(m.group(5)), int(m.group(6)) + 1)}
    return {f + m.group(4)}


def split_ops(s):
    out, depth, cur = [], 0, ''
    for ch in s:
        if ch in '[(':
            depth += 1
        if ch in '])':
            depth -= 1
        if ch == ',' and depth == 0:
            out.append(cur.strip())
            cur = ''
        else:
            cur += ch
    if cur.strip():
        out.append(cur.strip())
    return out


TRANS = ('v_exp_f32', 'v_log_f32', 'v_rcp_f32', 'v_rsq_f32', 'v_sqrt_f32', 'v_sin_f32', 'v_cos_f32')


class I:
    def __init__(self, text, tok=None, pseudo=None, arg=None):
        self.text = text
        self.tok = tok
        self.pseudo = pseudo
        self.arg = arg
        self.defs = set()
        self.uses = set()
        self.srcc = set()
        self.kind = 'other'
        if pseudo is None:
            self.parse()

    def parse(self):
        t = self.text.split(';')[0].strip()
        parts = t.split(None, 1)
        op = parts[0]
        self.op = op
        rest = parts[1] if len(parts) > 1 else ''
        ops = split_ops(rest)
        mods = ''
        if ops:
            lp = ops[-1].split(None, 1)
            ops[-1] = lp[0]
            mods = lp[1] if len(lp) > 1 else ''
        self.mods = mods
        R = [regs_of(o) for o in ops]
        U = lambda idx: set().union(*[R[i] for i in idx if i < len(R)]) if idx else set()
        n = len(R)
        if op.startswith('v_mfma'):
            self.kind = 'mfma'
            self.defs = R[0]
            self.uses = U([1, 2, 3])
            self.srcab = U([1, 2])
            self.srcc = R[3]
        elif op.startswith('v_cmp'):
            self.kind = 'valu'
            self.defs = R[0]
            self.uses = U(range(1, n))
        elif op.startswith('v_readfirstlane') or op.startswith('v_readlane'):
            self.kind = 'valu'
            self.defs = R[0]
            self.uses = U(range(1, n))
        elif op.startswith('v_permlane'):
            self.kind = 'valu'
            self.defs = R[0] | R[1]
            self.uses = R[0] | R[1]
        elif op.startswith('v_'):
            self.kind = 'valu'
            base = op.replace('_e32', '').replace('_e64', '').replace('_dpp', '')
            if base in TRANS:
                self.kind = 'trans'
            self.defs = set(R[0])
            self.uses = U(range(1, n))
            if base.startswith(('v_fmac', 'v_dot2c', 'v_writelane')) or op.endswith('_dpp'):
                self.uses |= R[0]
            if base.startswith(('v_add_co', 'v_addc_co', 'v_sub_co')):
                self.defs |= R[1]
        elif op.startswith('ds_read'):
            self.kind = 'dsr'
            self.defs = R[0]
            self.uses = U(range(1, n))
        elif op.startswith('ds_write'):
            self.kind = 'dsw'
            self.uses = U(range(0, n))
            if 'addtid' in op:
                self.uses |= {'m0'}
        elif op.startswith('buffer_load') or op.startswith('global_load'):
            if re.search(r'\blds\b', mods):
                self.kind = 'dma'
                self.uses = U(range(0, n)) | {'m0'}
            else:
                self.kind = 'vld'
                self.defs = R[0]
                self.uses = U(range(1, n))
        elif op.startswith('buffer_store') or op.startswith('global_store'):
            self.kind = 'vst'
            self.uses = U(range(0, n))
            self.stdata = R[0] if op.startswith('buffer') else R[1]
            self.wide = op.endswith(('x3', 'x4'))
        elif op.startswith('s_load') or op in ('s_memtime', 's_memrealtime'):
            self.kind = 'smem'
            self.defs = R[0]
            self.uses = U(range(1, n))
        elif op in ('s_waitcnt', 's_barrier', 's_nop', 's_endpgm', 's_setprio', 's_branch', 's_sleep') or op.startswith('s_cbranch'):
            self.kind = 'ctl'
            if op.startswith('s_cbranch_vcc'):
                self.uses = {'vcc'}
        elif op.startswith('s_cmp') or op.startswith('s_bitcmp'):
            self.kind = 'salu'
            self.uses = U(range(0, n))
        elif op.startswith('s_'):
            self.kind = 'salu'
            self.defs = R[0]
            self.uses = U(range(1, n))
        else:
            raise ValueError('unknown op ' + t)

    def states(self):
        if self.pseudo:
            return 0
        if self.op == 's_nop':
            return int(self.text.split()[1]) + 1
        return 1


def waitv(tok):
    return I('', pseudo='waitv', arg=tok)


def waitl(tok=None):
    return I('', pseudo='waitl', arg=tok)


def label(name):
    return I(name + ':', pseudo='label')


def comment(s):
    return I('; ' + s, pseudo='raw')


class S(list):
    def __call__(self, text, tok=None):
        for l in text.strip().split('\n'):
            l = l.strip()
            if not l or l.startswith(';'):
                continue
            self.append(I(l, tok=tok))
        return self


def insert_waits(prog):
    out = []
    vq = []
    lq = []
    smem_pending = set()
    seen_tok = set()

    def emit_wait(vn, ln):
        parts = []
        if vn is not None:
            parts.append(f'vmcnt({min(vn, 63)})')
        if ln is not None:
            parts.append(f'lgkmcnt({min(ln, 15)})')
        if not parts:
            return
        if out and out[-1].pseudo is None and out[-1].op == 's_waitcnt' and getattr(out[-1], 'auto', False):
            p = out.pop()
            pv, pl = p.vn, p.ln
            if pv is not None:
                vn = pv if vn is None else min(vn, pv)
            if pl is not None:
                ln = pl if ln is None else min(ln, pl)
            parts = []
            if vn is not None:
                parts.append(f'vmcnt({min(vn, 63)})')
            if ln is not None:
                parts.append(f'lgkmcnt({min(ln, 15)})')
        w = I('s_waitcnt ' + ' '.join(parts))
        w.auto = True
        w.vn, w.ln = vn, ln
        out.append(w)

    def retire(q, idx, cap):
        n = min(len(q) - 1 - idx, cap)
        del q[:len(q) - n]
        return n

    for ins in prog:
        if ins.pseudo == 'waitv':
            toks = ins.arg if isinstance(ins.arg, (list, tuple)) else [ins.arg]
            for t in toks:
                assert t is None or t in seen_tok, f'waitv on unseen token {t}'
            idx = -1
            for i, o in enumerate(vq):
                if ins.arg is None or o.tok in toks:
                    idx = i
            if idx >= 0:
                emit_wait(retire(vq, idx, 63), None)
            continue
        if ins.pseudo == 'waitl':
            assert ins.arg is None or ins.arg in seen_tok, f'waitl on unseen token {ins.arg}'
            idx = -1
            for i, o in enumerate(lq):
                if ins.arg is None or o.tok == ins.arg:
                    idx = i
            if ins.arg is None and smem_pending:
                emit_wait(None, 0)
                smem_pending.clear()
                lq.clear()
            elif idx >= 0:
                emit_wait(None, retire(lq, idx, 15))
            continue
        if ins.pseudo:
            out.append(ins)
            continue
        touch = ins.uses | ins.defs
        vn = ln = None
        idx = -1
        for i, o in enumerate(vq):
            if o.defs & touch:
                idx = i
        if idx >= 0:
            vn = retire(vq, idx, 63)
        if smem_pending & touch:
            ln = 0
            smem_pending.clear()
            lq.clear()
        else:
            idx = -1
            for i, o in enumerate(lq):
                if o.defs & touch:
                    idx = i
            if idx >= 0:
                if smem_pending:
                    ln = 0
                    smem_pending.clear()
                    lq.clear()
                else:
                    ln = retire(lq, idx, 15)
        if vn is not None or ln is not None:
            emit_wait(vn, ln)
        if ins.op == 's_waitcnt':
            m = re.search(r'vmcnt\((\d+)\)', ins.text)
            if m:
                n = int(m.group(1))
                if len(vq) > n:
                    del vq[:len(vq) - n]
            m = re.search(r'lgkmcnt\((\d+)\)', ins.text)
            if m:
                n = int(m.group(1))
                if n == 0:
                    smem_pending.clear()
                if not smem_pending and len(lq) > n:
                    del lq[:len(lq) - n]
        out.append(ins)
        if ins.tok is not None:
            seen_tok.add(ins.tok)
        if ins.kind in ('dma', 'vld', 'vst'):
            vq.append(ins)
        elif ins.kind in ('dsr', 'dsw'):
            lq.append(ins)
        elif ins.kind == 'smem':
            smem_pending |= ins.defs
    return out


def isv(r):
    return r[0] in 'va' and r != 'vcc'


def iss(r):
    return r[0] == 's' or r == 'vcc'


def need_states(p, c):
    n = 0
    pv = p.kind in ('valu', 'trans')
    cv = c.kind in ('valu', 'trans')
    cmem = c.kind in ('dma', 'vld', 'vst', 'dsr', 'dsw')
    if pv:
        vd = {r for r in p.defs if isv(r)}
        sd = {r for r in p.defs if iss(r)}
        if c.kind == 'mfma' and vd & c.uses:
            n = max(n, 2)
        if cv and c.op.startswith('v_permlane') and vd & c.uses:
            n = max(n, 2)
        if cv and c.op.endswith('_dpp') and vd & c.uses:
            n = max(n, 2)
        if cv and c.op.startswith(('v_readfirstlane', 'v_readlane')) and vd & c.uses:
            n = max(n, 1)
        if p.kind == 'trans' and (cv or cmem or c.kind == 'mfma') and vd & c.uses:
            n = max(n, 1)
        if sd and c.kind in ('dma', 'vld', 'vst') and sd & c.uses:
            n = max(n, 5)
        if sd and cv and sd & c.uses:
            n = max(n, 4 if c.op.startswith(('v_readlane', 'v_writelane')) else 2)
        if sd and c.kind in ('salu', 'ctl') and sd & c.uses:
            n = max(n, 1)
        if p.op.startswith('v_dot2'):
            if vd & (c.uses | c.defs):
                same = c.pseudo is None and c.op == p.op
                if same and not (vd & (c.uses - c.defs)):
                    pass
                else:
                    n = max(n, 3)
    if p.kind == 'mfma':
        if c.kind == 'mfma':
            if p.defs & c.srcab:
                n = max(n, 12)
            if p.defs & c.srcc and p.defs != c.srcc:
                n = max(n, 10)
            if p.defs & c.defs and p.defs != c.srcc:
                n = max(n, 10)
        elif (cv or cmem) and p.defs & (c.uses | c.defs):
            n = max(n, 12)
        if cv and p.srcc & c.defs:
            n = max(n, 7)
    if p.kind == 'salu' and 'm0' in p.defs and 'm0' in c.uses and cmem:
        n = max(n, 1)
    if p.kind == 'vst' and p.wide and (p.stdata & c.defs):
        n = max(n, 2)
    return n


def insert_nops(prog):
    out = []
    for ins in prog:
        if ins.pseudo is None:
            dist = 0
            need = 0
            for p in reversed(out):
                if p.pseudo:
                    continue
                r = need_states(p, ins) - dist
                need = max(need, r)
                dist += p.states()
                if dist >= 14:
                    break
            if need > 0:
                out.append(I(f's_nop {need - 1}'))
        out.append(ins)
    return out


def render(prog):
    L = []
    for i in prog:
        if i.pseudo in ('label', 'raw'):
            L.append(i.text)
        elif i.pseudo is None:
            L.append('  ' + i.text)
        else:
            raise ValueError('unresolved pseudo')
    return '\n'.join(L) + '\n'


def cost(ins):
    if ins.pseudo in ('waitv', 'waitl'):
        return 1
    if ins.pseudo:
        return 0
    if ins.kind == 'trans':
        return 2
    if ins.kind in ('dma', 'vld', 'vst'):
        return 2
    if ins.kind == 'mfma':
        return 2
    return 1


def weave(gaps, sides):
    extra = [[] for _ in gaps]
    for stream, g0, g1 in sides:
        items = [it if isinstance(it, list) else [it] for it in stream]
        if not items:
            continue
        costs = [sum(cost(x) for x in it) for it in items]
        total = sum(costs)
        ng = g1 - g0 + 1
        acc = 0
        for it, c in zip(items, costs):
            g = g0 + min(ng - 1, int(acc * ng / total)) if total else g0
            extra[g].extend(it)
            acc += c
    out = []
    for g, e in zip(gaps, extra):
        out.extend(g)
        out.extend(e)
    return out
```

```python
import sys, struct, math
from ir import *

KN = 'parallel_sum__ssm_conv_s5__geglu_ffn__prompt_kernel'


def f2u(x):
    return struct.unpack('<I', struct.pack('<f', x))[0]


def hx(x):
    return hex(f2u(x))


class Cfg:
    prof = False
    b2_p2 = 4
    b2_p3 = 4
    b2_p4 = 6
    la_w = 5
    la_a2 = 8
    out_flags = ''
    spin = 200000


EP = 0
FL = 4096
EG = 32768
A2 = 262144
MT_STRIDE = 152 * 2048
WS_BYTES = A2 + 32 * MT_STRIDE
PROF = 0x1000000
OOB = 0x40000000
TILE = 4352
R0, R1, R2 = 0, 33024, 66048
WSSM = 69632
TRANS0 = 104448
ST = 156672
EX = 157696
CP = 159744
LDS_BYTES = 163840
sT, sWV, sTB, sCG, sMT, sNT, sB0, sTAG, sT2 = 's3', 's4', 's5', 's6', 's7', 's8', 's9', 's10', 's11'
sT3, sT4 = 's12', 's13'
sISE = 's[14:15]'
SRD_X, SRD_S, SRD_F, SRD_CR, SRD_CI, SRD_D, SRD_W, SRD_O = [f's[{48+4*i}:{51+4*i}]' for i in range(8)]
sCX = ['0', 's80', 's81', 's82']
sCT = ['0', 's83', 's84', 's85']
sGX = ['s86', 's87', 's88', 's89']
sGF = ['s90', 's91', 's92', 's93']
sBC = {(0, 'E'): 's22', (0, 'O'): 's23', (1, 'E'): 's24', (1, 'O'): 's25', (2, 'E'): 's26', (2, 'O'): 's27'}
sWD = ['s34', 's35', 's36', 's37', 's38', 's39', 's40', 's41', 's42', 's43', 's44']
sMX, sMF, sMTR, sMS = 's28', 's29', 's45', 's46'
sSTB = 's47'
sST4 = 's94'
sFLA = 's95'
sFL4 = 's96'
sA2 = 's97'
sFLC = 's98'
sM3 = 's99'
sSPIN = 's100'
sA2B = 's101'
sMASK = 's16'
sONE = 's17'
vT, vL16, vPatC, vPatD, vPatF, vX0 = 'v0', 'v1', 'v2', 'v3', 'v4', 'v5'
vRa = ['v6', 'v7']
vRd = ['v8', 'v9']
vW, vStH, vK2, vX1 = 'v10', 'v11', 'v12', 'v13'
vLr, vLi, vMr, vMi, vPr, vPi = 'v14', 'v15', 'v16', 'v17', 'v18', 'v19'
vW0r, vW0i, vW1r, vW1i = 'v20', 'v21', 'v22', 'v23'
EB = 24
SR, SI = 32, 48
ACC = [64, 96]
AB = 128
vL16r, vL16i, vCr, vCi, vSig, vExW, vExR = 'v96', 'v97', 'v98', 'v99', 'v100', 'v101', 'v102'
vRs = ['v103', 'v104']
vNr, vNc = 'v105', 'v106'
vPatX, vPatS = 'v107', 'v108'


def q(f, b, n=4):
    return f'{f}[{b}:{b+n-1}]'


def tile_slot_areg(t):
    if t < 14:
        return 32 + 16 * t
    if t < 16:
        return 16 * (t - 14)
    return 32 + 16 * (t - 16)


def b2frag(kap, nb):
    if kap < 8:
        t, f = kap >> 1, (kap & 1) * 2 + nb
    elif kap < 24:
        x = kap - 8
        cgl, s = x >> 2, x & 3
        cc, m = cgl >> 1, s >> 1
        jj = (cgl & 1) * 2 + (s & 1)
        t, f = 4 + cc * 4 + m * 2 + nb, jj
    elif kap < 32:
        x = kap - 24
        t, f = 12 + (x >> 1), (x & 1) * 2 + nb
    else:
        x = kap - 32
        t, f = 16 + (x >> 1), (x & 1) * 2 + nb
    return tile_slot_areg(t) + 4 * f, t


class Gen:
    def __init__(self, cfg):
        self.c = cfg
        self.slow = []
        self.nstamp = 0
        self.tslot = 0

    def stamp(self, name):
        s = S()
        if not self.c.prof:
            return s
        k = self.nstamp
        self.nstamp += 1
        self.stamp_names.append(name)
        s(f's_memtime s[0:1]')
        s('s_waitcnt lgkmcnt(0)')
        if self.vprof is None:
            s(f'v_accvgpr_read_b32 {vT}, a31')
            s(f'v_writelane_b32 {vT}, s0, {k}')
            s(f'v_accvgpr_write_b32 a31, {vT}')
            if name == 'p4 end':
                self.vprof = vW
                s(f'v_mov_b32 {vW}, {vT}')
        else:
            s(f'v_writelane_b32 {self.vprof}, s0, {k}')
        return s

    def tile_dma(self, addr, srd, sc, m0base, m0imm, tok):
        s = S()
        s(f's_add_u32 m0, {m0base}, {m0imm}')
        s += addr
        for j in range(4):
            s(f'buffer_load_dwordx4 {vT}, {srd}, {sc[j]} offen offset:{j*1088} lds' if j else
              f'buffer_load_dwordx4 {vT}, {srd}, {sc[j]} offen lds', tok=tok)
        return s

    def x_tile(self, c):
        s = S()
        if c & 1:
            s(f's_add_u32 {sT}, {sGX[c>>1]}, 128')
            s(f'v_add_u32 {vT}, {sT}, {vPatX}')
        else:
            s(f'v_add_u32 {vT}, {sGX[c>>1]}, {vPatX}')
        return self.tile_dma(s, SRD_X, sCX, sMX, (c & 3) * TILE, f'x{c}')

    def wssm_tile(self, g):
        s = S()
        s(f'v_add_u32 {vT}, {sGX[g]}, {vPatS}')
        return self.tile_dma(s, SRD_S, sCT, sMS, g * 4 * TILE, f'ws{g}')

    def wf_pair(self, b, cls, g, region):
        s = S()
        base = region + (128 if cls == 'E' else 0) + g * 8192
        tok = f'wf{b}{cls}{g}'
        s(f's_add_u32 m0, {sMF}, {base}')
        s(f's_add_u32 {sT}, {sGF[g]}, {sBC[(b, cls)]}')
        s(f'buffer_load_dwordx4 {vPatF}, {SRD_F}, {sT} offen lds', tok=tok)
        s(f's_add_u32 {sT}, {sT}, {32*2752 - 1024}')
        s(f'buffer_load_dwordx4 {vPatF}, {SRD_F}, {sT} offen offset:1024 lds', tok=tok)
        return list(s)

    def b2_tile(self, t):
        slot = self.tslot % 3
        self.tslot += 1
        d = S()
        r = []
        ab = tile_slot_areg(t)
        tok = f'b2_{t}'
        if 4 <= t < 12:
            x = t - 4
            cc, m, nb = x >> 2, (x >> 1) & 1, x & 1
            off = nb * 32768 + cc * 128
            if off:
                d(f'v_add_u32 {vT}, {off}, {vPatC}')
            else:
                d(f'v_mov_b32 {vT}, {vPatC}')
            d = self.tile_dma(d, SRD_CI if m else SRD_CR, sCT, sMTR, slot * TILE, tok)
            r.append(waitv(tok))
            for jj in range(4):
                r.append(I(f'ds_read_b128 {q("a", ab+4*jj)}, {vRa[jj&1]} offset:{slot*TILE + 64*(jj>>1)}', tok=tok + 'r'))
        else:
            i = t if t < 4 else t - 8
            d(f'v_add_u32 {vT}, {sWD[i]}, {vPatD}')
            d = self.tile_dma(d, SRD_D, sCT, sMTR, slot * TILE, tok)
            r.append(waitv(tok))
            for ks in range(2):
                for nb in range(2):
                    for tt in range(2):
                        r.append(I(f'ds_read_b64_tr_b16 {q("a", ab+4*(ks*2+nb)+2*tt, 2)}, {vRd[nb]} offset:{slot*TILE + (2*ks+tt)*1088}', tok=tok + 'r'))
        return list(d), r

    def b2_stream(self, tiles, flush=False):
        items = []
        for t in tiles:
            if len(self.b2_pend) >= 2:
                items += self.b2_pend.pop(0)
            d, r = self.b2_tile(t)
            if self.b2_last_r[(self.tslot - 1) % 3] is not None:
                d = [waitl(self.b2_last_r[(self.tslot - 1) % 3])] + d
            self.b2_last_r[(self.tslot - 1) % 3] = f'b2_{t}r'
            items.append(d)
            self.b2_pend.append(r)
        if flush:
            while self.b2_pend:
                items += self.b2_pend.pop(0)
        return items

    def flag_store(self, tok, saddr, imm):
        s = [waitv(tok)]
        t = S()
        t(f'v_mov_b32 {vT}, {sTAG}')
        t('s_mov_b64 exec, 1')
        t(f'buffer_store_dword {vT}, off, {SRD_W}, {saddr} offset:{imm} sc1')
        t('s_mov_b64 exec, -1')
        return s + list(t)

    def cmul(self, s, dr, di, ar, ai, br, bi):
        s(f'v_mul_f32 {dr}, {ar}, {br}')
        s(f'v_mul_f32 {di}, {ar}, {bi}')
        s(f'v_fma_f32 {dr}, -{ai}, {bi}, {dr}')
        s(f'v_fmac_f32 {di}, {ai}, {br}')

    def pw(self, s, dr, di, n, zr, zi, t0, t1):
        s(f'v_mul_f32 {t0}, {n}, {zr}')
        s(f'v_mul_f32 {t1}, {n}, {zi}')
        s(f'v_exp_f32 {t0}, {t0}')
        s(f'v_rndne_f32 {dr}, {t1}')
        s(f'v_sub_f32 {t1}, {t1}, {dr}')
        s(f'v_cos_f32 {dr}, {t1}')
        s(f'v_sin_f32 {di}, {t1}')
        s(f'v_mul_f32 {dr}, {dr}, {t0}')
        s(f'v_mul_f32 {di}, {di}, {t0}')

    def bfr(self, s, d):
        s(f'v_cvt_pk_bf16_f32 {d}, {d}, {d}')
        s(f'v_lshlrev_b32 {d}, 16, {d}')

    def ffn_epi(self, a, sbase, imm_base, tok):
        G, U = ACC[a], ACC[a] + 16
        k1 = -2.0 * math.log2(math.e) * math.sqrt(2.0 / math.pi)
        s = S()
        tmp = [vX0, vX1]
        for half in range(2):
            for p in range(4):
                e = [half * 8 + 2 * p, half * 8 + 2 * p + 1]
                for k in range(2):
                    s(f'v_mul_f32 {tmp[k]}, v{G+e[k]}, v{G+e[k]}')
                for k in range(2):
                    s(f'v_mul_f32 v{U+e[k]}, v{G+e[k]}, v{U+e[k]}')
                for k in range(2):
                    s(f'v_fmaak_f32 {tmp[k]}, {tmp[k]}, {vK2}, {hx(k1)}')
                for k in range(2):
                    s(f'v_mul_f32 v{G+e[k]}, v{G+e[k]}, {tmp[k]}')
                for k in range(2):
                    s(f'v_exp_f32 v{G+e[k]}, v{G+e[k]}')
                for k in range(2):
                    s(f'v_add_f32 v{G+e[k]}, 1.0, v{G+e[k]}')
                for k in range(2):
                    s(f'v_rcp_f32 v{G+e[k]}, v{G+e[k]}')
                for k in range(2):
                    s(f'v_mul_f32 v{U+e[k]}, v{U+e[k]}, v{G+e[k]}')
                s(f'v_cvt_pk_bf16_f32 v{G+half*8+p}, v{U+e[0]}, v{U+e[1]}')
        items = list(s)
        st = S()
        st(f's_add_u32 {sT}, {sbase}, {imm_base}')
        st(f'buffer_store_dwordx4 {q("v", G)}, {vStH}, {SRD_W}, {sT} offen sc1', tok=tok)
        st(f'buffer_store_dwordx4 {q("v", G+8)}, {vStH}, {SRD_W}, {sT} offen offset:2048 sc1', tok=tok)
        items.append(list(st))
        return items

    def e_loads(self):
        s = S()
        s(f'v_lshrrev_b32 {vT}, 9, {vL16}')
        s(f'v_lshl_add_u32 {vT}, {sWV}, 1, {vT}')
        s(f'v_lshlrev_b32 {vT}, 1, {vT}')
        s(f'v_and_b32 v{EB}, 0x1f0, {vL16}')
        s(f'v_lshl_add_u32 v{EB}, {vT}, 9, v{EB}')
        s(f'v_add_u32 v{EB+4}, 512, v{EB}')
        s(f'v_mov_b32 v{EB+1}, {OOB}')
        s(f'v_cmp_gt_u32 s[0:1], {sTB}, {vT}')
        s(f'v_add_u32 {vT}, 1, {vT}')
        s(f'v_cmp_gt_u32 s[18:19], {sTB}, {vT}')
        s(f's_lshl_b32 {sT}, {sCG}, 13')
        s(f's_add_u32 {sT}, {sT}, {EG}')
        s(f'v_cndmask_b32 v{EB}, v{EB+1}, v{EB}, s[0:1]')
        s(f'v_cndmask_b32 v{EB+4}, v{EB+1}, v{EB+4}, s[18:19]')
        s(f's_mov_b64 s[20:21], s[0:1]')
        s(f'buffer_load_dwordx4 {q("v", EB)}, v{EB}, {SRD_W}, {sT} offen sc1')
        s(f'buffer_load_dwordx4 {q("v", EB+4)}, v{EB+4}, {SRD_W}, {sT} offen sc1')
        return s

    def e_check(self):
        s = S()
        s(f'v_xor_b32 v{EB+2}, {sTAG}, v{EB+2}')
        s(f'v_xor_b32 v{EB+3}, {sTAG}, v{EB+3}')
        s(f'v_xor_b32 v{EB+6}, {sTAG}, v{EB+6}')
        s(f'v_xor_b32 v{EB+7}, {sTAG}, v{EB+7}')
        s(f'v_or_b32 v{EB+2}, v{EB+2}, v{EB+3}')
        s(f'v_or_b32 v{EB+6}, v{EB+6}, v{EB+7}')
        s(f'v_cmp_ne_u32 s[0:1], 0, v{EB+2}')
        s(f'v_cmp_ne_u32 vcc, 0, v{EB+6}')
        s(f's_and_b64 s[0:1], s[0:1], s[20:21]')
        s(f's_and_b64 vcc, vcc, s[18:19]')
        s(f's_or_b64 s[0:1], s[0:1], vcc')
        return s

    def finalize(self, prog):
        return render(insert_nops(insert_waits(prog)))

    def add_slow(self, name, load, check):
        p = [label(f'{name}_slow')]
        p += list(S()('s_nop 7'))
        p += list(load)
        p += list(S()(f's_waitcnt vmcnt(0)\ns_add_u32 {sSPIN}, {sSPIN}, 1\ns_cmp_gt_u32 {sSPIN}, {self.c.spin}\ns_cbranch_scc1 {name}_back'))
        p += list(check)
        p += list(S()(f's_cbranch_scc1 {name}_slow\ns_nop 3\ns_branch {name}_back'))
        self.slow.append(self.finalize(p))

    def fl_load(self, reg):
        s = S()
        s(f'v_lshrrev_b32 {reg}, 2, {vL16}')
        s(f'v_and_b32 {reg}, 0x7c, {reg}')
        s(f'buffer_load_dword {reg}, {reg}, {SRD_W}, {sFLC} offen sc1')
        return s

    def fl_check(self, reg, st):
        s = S()
        m = sM3 if st == 3 else hex(0xff << (8 * st))
        s(f'v_cmp_ne_u32 s[0:1], {sTAG}, {reg}')
        s(f's_and_b32 s0, s0, {m}')
        return s

    def fl_gate(self, reg, st):
        name = f'Lfl{st}'
        self.add_slow(name, self.fl_load(reg), self.fl_check(reg, st))
        g = list(self.fl_check(reg, st)) + list(S()(f's_cbranch_scc1 {name}_slow')) + [label(f'{name}_back')]
        return g

    def build(self):
        c = self.c
        self.stamp_names = []
        self.vprof = None
        P = S()
        NRING = 7 if c.prof else 8
        P(f'''
s_cmp_ge_u32 s2, 256
s_cbranch_scc1 Lend''')
        if c.prof:
            P('s_memtime s[94:95]\ns_memrealtime s[96:97]')
        P(f'''
s_load_dwordx16 s[16:31], s[0:1], 0
s_load_dwordx16 s[32:47], s[0:1], 64''')
        P(f'''
v_lshrrev_b32 v64, 6, v0
v_and_b32 v65, 63, v0
v_readfirstlane_b32 {sWV}, v64
s_and_b32 {sT}, s2, 7
s_lshr_b32 {sT2}, s2, 3
s_lshr_b32 {sTB}, {sT}, 1
s_lshl_b32 {sTB}, {sTB}, 2
s_and_b32 {sT3}, {sT2}, 3
s_add_u32 {sTB}, {sTB}, {sT3}
s_and_b32 {sT}, {sT}, 1
s_lshr_b32 {sNT}, {sT2}, 2
s_lshl_b32 {sCG}, {sT}, 3
s_add_u32 {sCG}, {sCG}, {sNT}
s_lshl_b32 {sMT}, {sTB}, 1
s_add_u32 {sMT}, {sMT}, {sT}
v_lshrrev_b32 v66, 3, v65
v_and_b32 v67, 7, v65
v_bfe_u32 v68, v65, 4, 2
v_xor_b32 v68, v67, v68
v_lshlrev_b32 v68, 4, v68
v_lshrrev_b32 v69, 2, v66
v_and_b32 v70, 3, v66
v_lshl_add_u32 v69, v69, 4, v70
v_lshl_add_u32 {vPatX}, v69, 10, v68
s_lshl_b32 {sT3}, {sTB}, 2
s_add_u32 {sT3}, {sT3}, {sWV}
s_lshl_b32 {sT4}, {sT3}, 15
v_add_u32 {vPatX}, {sT4}, {vPatX}
s_mul_i32 {sT4}, {sWV}, {4*TILE}
s_mov_b32 s80, 3008
s_mov_b32 s81, 6016
s_mov_b32 s82, 9024''')
        for g in range(4):
            P(f's_add_u32 {sT2}, {sCG}, {g}\ns_and_b32 {sT2}, {sT2}, 3\ns_lshl_b32 {sGX[g]}, {sT2}, 8')
        P(f'''
v_and_b32 v71, 31, v65
s_lshl_b32 {sT2}, {sCG}, 5
v_add_lshl_u32 v72, v71, {sT2}, 1
v_mov_b32 v73, 0
s_waitcnt lgkmcnt(0)
s_mov_b32 s48, s16
s_mov_b32 s49, s17
s_mov_b32 s50, {2048*1024}
s_mov_b32 s51, 0x20000
global_load_ushort v80, v72, s[18:19]
global_load_ushort v81, v72, s[20:21]
global_load_ushort v82, v72, s[30:31]
global_load_dword v83, v73, s[46:47] sc1''')
        P(f'''
s_cmp_ge_u32 {sWV}, 2
s_cselect_b32 s52, s24, s22
s_cselect_b32 s53, s25, s23
s_cselect_b32 s56, s38, s36
s_cselect_b32 s57, s39, s37
s_mov_b32 s60, s26
s_mov_b32 s61, s27
s_mov_b32 s64, s28
s_mov_b32 s65, s29
s_mov_b32 {sMX}, {sT4}''')
        for cc in range(4):
            P += self.x_tile(cc)
        if c.prof:
            P(f'v_mov_b32 {vT}, 0\nv_writelane_b32 {vT}, s94, 60\nv_writelane_b32 {vT}, s96, 61\nv_accvgpr_write_b32 a31, {vT}')
        P += self.stamp('x issued')
        P(f'''
s_mov_b32 s54, {512*1024}
s_mov_b32 s55, 0x20000
s_mov_b32 s58, {512*2752}
s_mov_b32 s59, 0x20000
s_mov_b32 s62, {512*1024}
s_mov_b32 s63, 0x20000
s_mov_b32 s66, {512*1024}
s_mov_b32 s67, 0x20000
s_mov_b32 s68, s40
s_mov_b32 s69, s41
s_mov_b32 s70, {1376*1024}
s_mov_b32 s71, 0x20000
s_mov_b32 s72, s46
s_mov_b32 s73, s47
s_mov_b32 s74, {hex(PROF + 0x100000) if c.prof else WS_BYTES}
s_mov_b32 s75, 0x20000
s_mov_b32 s76, s42
s_mov_b32 s77, s43
s_mov_b32 s78, {2048*2048}
s_mov_b32 s79, 0x20000
s_mov_b32 s83, 7104
s_mov_b32 s84, 14208
s_mov_b32 s85, 21312
s_mov_b32 {sMASK}, 0xffff0000
s_mov_b32 {sONE}, 0x3f803f80
s_mov_b32 {sSPIN}, 0''')
        P(f'''
s_mul_i32 {sB0}, {sCG}, 3
s_lshl_b32 {sT}, {sCG}, 1
s_add_u32 {sT}, {sT}, 11
s_min_u32 {sB0}, {sB0}, {sT}
s_and_b32 {sT}, {sB0}, 1
s_mul_i32 {sT2}, {sT}, 2752
s_xor_b32 {sT}, {sT}, 1
s_mul_i32 {sT}, {sT}, 2752
s_lshl_b32 {sT4}, {sB0}, 6
s_add_u32 {sBC[(0,'E')]}, {sT4}, {sT2}
s_add_u32 {sBC[(0,'O')]}, {sT4}, {sT}
s_add_u32 {sBC[(1,'E')]}, {sBC[(0,'E')]}, 64
s_add_u32 {sBC[(1,'O')]}, {sBC[(0,'O')]}, 64
s_cmp_lt_u32 {sCG}, 11
s_cselect_b32 {sT}, 0, {OOB}
s_add_u32 {sT}, {sT}, 128
s_add_u32 {sBC[(2,'E')]}, {sBC[(0,'E')]}, {sT}
s_add_u32 {sBC[(2,'O')]}, {sBC[(0,'O')]}, {sT}
s_and_b32 {sT}, {sWV}, 1
s_mul_i32 {sT}, {sT}, {64*2752}''')
        for g in range(4):
            P(f's_mul_i32 {sGF[g]}, {sGX[g]}, 1376\ns_add_u32 {sGF[g]}, {sGF[g]}, {sT}')
        P(f'''
s_lshl_b32 {sMF}, {sWV}, 11
s_mul_i32 {sMTR}, {sWV}, {3*TILE}
s_add_u32 {sMTR}, {sMTR}, {TRANS0}
s_mul_i32 {sMS}, {sWV}, {TILE}
s_add_u32 {sMS}, {sMS}, {WSSM}''')
        for i in range(4):
            P(f'''
s_lshl_b32 {sT}, {sWV}, 2
s_add_u32 {sT}, {sT}, {i}
s_mul_i32 {sT2}, {sT}, 3
s_lshl_b32 {sT}, {sT}, 1
s_add_u32 {sT}, {sT}, 11
s_min_u32 {sT}, {sT}, {sT2}
s_lshl_b32 {sWD[i]}, {sT}, 15
s_add_u32 {sWD[4+i]}, {sWD[i]}, 32768''')
        P(f'''
s_mul_i32 {sT}, {sWV}, {9*32768}
s_add_u32 {sWD[8]}, {sT}, {2*32768}
s_add_u32 {sWD[9]}, {sT}, {5*32768}
s_add_u32 {sWD[10]}, {sT}, {8*32768}
s_cmp_eq_u32 {sWV}, 3
s_cselect_b32 {sWD[10]}, {OOB}, {sWD[10]}
s_cselect_b32 {sM3}, 0x33, 0x77
s_lshl_b32 {sM3}, {sM3}, 24''')
        P(f'''
s_lshr_b32 {sT}, {sT3}, 1
s_and_b32 {sT2}, {sT3}, 1
s_mul_i32 {sSTB}, {sT}, {MT_STRIDE}
s_lshl_b32 {sT4}, {sT2}, 10
s_add_u32 {sSTB}, {sSTB}, {sT4}
s_lshl_b32 {sT4}, {sCG}, 12
s_add_u32 {sSTB}, {sSTB}, {sT4}
s_add_u32 {sSTB}, {sSTB}, {A2}
s_lshl_b32 {sT}, {sT}, 9
s_lshl_b32 {sT2}, {sT2}, 4
s_add_u32 {sT}, {sT}, {sT2}
s_add_u32 {sT}, {sT}, {FL}
s_lshr_b32 {sT2}, {sCG}, 2
s_lshl_b32 {sT2}, {sT2}, 7
s_and_b32 {sT4}, {sCG}, 3
s_lshl_b32 {sT4}, {sT4}, 2
s_add_u32 {sFLA}, {sT}, {sT2}
s_add_u32 {sFLA}, {sFLA}, {sT4}
s_mul_i32 {sT2}, {sCG}, 43
s_lshr_b32 {sT2}, {sT2}, 7
s_mul_i32 {sT4}, {sT2}, 3
s_sub_u32 {sT4}, {sCG}, {sT4}
s_lshl_b32 {sT2}, {sT2}, 7
s_lshl_b32 {sT4}, {sT4}, 2
s_add_u32 {sFL4}, {sT}, {sT2}
s_add_u32 {sFL4}, {sFL4}, {sT4}
s_cmp_lt_u32 {sCG}, 11
s_cselect_b32 {sFL4}, {sFL4}, {OOB}
s_cselect_b32 {sST4}, {sSTB}, {OOB}
s_lshl_b32 {sT}, {sMT}, 2
s_add_u32 {sT}, {sT}, {sWV}
s_lshl_b32 {sFLC}, {sT}, 7
s_add_u32 {sFLC}, {sFLC}, {FL}
s_mul_i32 {sA2B}, {sMT}, {MT_STRIDE}
s_add_u32 {sA2B}, {sA2B}, {A2}''')
        P(f'''
v_lshlrev_b32 {vL16}, 4, v65
v_lshl_add_u32 v69, v66, 10, v68
s_lshl_b32 {sT}, {sCG}, 15
s_and_b32 {sT2}, {sWV}, 1
s_lshl_b32 {sT2}, {sT2}, 7
s_add_u32 {sT}, {sT}, {sT2}
v_add_u32 {vPatS}, {sT}, v69
s_lshl_b32 {sT}, {sNT}, 16
s_lshl_b32 {sT2}, {sWV}, 8
s_add_u32 {sT}, {sT}, {sT2}
v_add_u32 {vPatC}, {sT}, v69
v_bfe_u32 v69, v65, 4, 1
v_lshlrev_b32 v69, 2, v69
v_xor_b32 v69, v67, v69
v_lshlrev_b32 v69, 4, v69
v_lshl_add_u32 v69, v66, 10, v69
s_lshl_b32 {sT}, {sNT}, 7
v_add_u32 {vPatD}, {sT}, v69
v_lshrrev_b32 v69, 2, v65
v_mul_u32_u24 v69, 5504, v69
v_and_b32 v70, 3, v65
v_lshl_add_u32 {vPatF}, v70, 4, v69''')
        P(f'''
v_lshrrev_b32 v74, 5, v65
v_lshrrev_b32 v69, 3, v71
v_mul_u32_u24 v69, 1088, v69
v_lshl_add_u32 v69, v67, 7, v69
v_bfe_u32 v75, v65, 1, 2
v_xor_b32 v75, v75, v74
v_lshl_add_u32 v69, v75, 4, v69
v_add_u32 {vRa[0]}, {sMX}, v69
v_xor_b32 {vRa[1]}, 32, {vRa[0]}
v_add_u32 {vRs[0]}, {WSSM}, v69
v_xor_b32 {vRs[1]}, 32, {vRs[0]}''')
        P(f'''
v_bfe_u32 v75, v65, 4, 1
v_lshlrev_b32 v75, 5, v75
v_lshl_add_u32 v75, v70, 3, v75
v_bfe_u32 v76, v65, 2, 2
v_lshl_add_u32 v77, v74, 2, v76
v_lshl_add_u32 v78, v77, 7, v75
v_bfe_u32 v79, v65, 3, 1
v_lshl_add_u32 v78, v79, 6, v78
v_add_u32 {vRd[0]}, {sMTR}, v78
v_xor_b32 {vRd[1]}, 64, {vRd[0]}
v_lshl_add_u32 v78, v74, 2, v79
v_lshl_add_u32 v78, v78, 6, v75
v_add_u32 v77, {sB0}, v76
v_and_b32 v77, 1, v77
v_cmp_eq_u32 {sISE}, 0, v77
v_mov_b32 v77, {R2}
v_mov_b32 v79, {R0 + 128}
v_cndmask_b32 v77, v77, v79, {sISE}
v_add_u32 {vW}, v77, v78''')
        P(f'''
v_bfe_u32 v77, v65, 2, 1
v_lshrrev_b32 v78, 3, v71
v_lshlrev_b32 v78, 2, v78
v_lshl_add_u32 v78, v77, 4, v78
v_add_u32 v78, v78, v70
v_lshl_add_u32 v77, v74, 5, v78
v_lshlrev_b32 {vStH}, 4, v77
s_lshl_b32 {sT}, {sWV}, 5
v_add_lshl_u32 v109, v78, {sT}, 3
v_add_u32 v109, {ST}, v109
v_lshl_add_u32 {vSig}, {sWV}, 1, v74
v_lshlrev_b32 {vExR}, 6, v71
v_add_u32 {vExR}, {EX}, {vExR}
v_lshl_add_u32 {vExW}, {vSig}, 3, {vExR}
v_mov_b32 {vK2}, {hx(-2.0 * math.log2(math.e) * math.sqrt(2.0 / math.pi) * 0.044715)}''')
        L2E = hx(math.log2(math.e))
        P(f'''
v_lshlrev_b32 v80, 16, v80
v_lshlrev_b32 v81, 16, v81
v_lshlrev_b32 v82, 16, v82
v_readfirstlane_b32 {sTAG}, v83
v_mul_f32 v82, {L2E}, v82
v_exp_f32 v82, v82
s_add_u32 {sTAG}, {sTAG}, 0x9e3779b9''')
        self.bfr(P, 'v82')
        P(f'''
v_mul_f32 v84, v82, v80
v_mul_f32 v85, v82, v81
v_mul_f32 v84, {L2E}, v84
v_mul_f32 v85, 0.15915494, v85''')
        self.pw(P, vLr, vLi, '1.0', 'v84', 'v85', 'v86', 'v87')
        self.pw(P, vL16r, vL16i, hx(16.0), 'v84', 'v85', 'v86', 'v87')
        P(f'''
v_mul_f32 v86, v80, v80
v_fmac_f32 v86, v81, v81
v_rcp_f32 v86, v86
v_add_f32 v87, -1.0, {vLr}
v_mul_f32 {vCr}, v87, v80
v_fmac_f32 {vCr}, {vLi}, v81
v_mul_f32 {vCi}, {vLi}, v80
v_fma_f32 {vCi}, -v87, v81, {vCi}
v_add_f32 v86, v86, v86
v_mul_f32 {vCr}, {vCr}, v86
v_mul_f32 {vCi}, {vCi}, v86
v_lshlrev_b32 v88, 4, {vSig}
v_cvt_f32_u32 v88, v88''')
        self.pw(P, 'v89', 'v90', 'v88', 'v84', 'v85', 'v86', 'v87')
        self.cmul(P, vMr, vMi, 'v89', 'v90', vCr, vCi)
        P(f'''
v_lshlrev_b32 v88, 1, {vSig}
v_sub_u32 v88, {sTB}, v88
v_add_u32 v89, -1, v88
v_add_u32 v90, -2, v88
v_max_i32 v89, 0, v89
v_max_i32 v90, 0, v90
v_lshlrev_b32 v89, 7, v89
v_lshlrev_b32 v90, 7, v90
v_cvt_f32_u32 v89, v89
v_cvt_f32_u32 v90, v90''')
        self.pw(P, vW0r, vW0i, 'v89', 'v84', 'v85', 'v86', 'v87')
        self.pw(P, vW1r, vW1i, 'v90', 'v84', 'v85', 'v86', 'v87')
        P += self.stamp('params')
        for k in range(4):
            P(f'v_mov_b32 v{64+k}, 0')

        def xstats(cc):
            s = S()
            for r in range(16):
                a = AB + cc * 16 + r
                s(f'v_dot2c_f32_bf16 v{64 + (r & 1)}, {sONE}, v{a}')
                s(f'v_dot2c_f32_bf16 v{66 + (r & 1)}, v{a}, v{a}')
            return s
        for cc in range(8):
            P.append(waitv(f'x{cc}'))
            for jj in range(4):
                P(f'ds_read_b128 {q("v", AB + cc*16 + 4*jj)}, {vRa[jj&1]} offset:{(cc&3)*TILE + 64*(jj>>1)}', tok=f'xr{cc}')
            if cc > 0:
                P += xstats(cc - 1)
            P.append(waitl(f'xr{cc}'))
            if cc < 4:
                P += self.x_tile(cc + 4)
            else:
                P += self.wssm_tile(cc - 4)
            if cc == 0:
                P += self.stamp('x0 landed')
        P += xstats(7)
        P += self.stamp('x done')
        P(f'''
v_add_f32 v64, v64, v65
v_add_f32 v66, v66, v67
v_mov_b32 v65, v64
v_mov_b32 v67, v66
v_permlane32_swap_b32 v64, v65
v_permlane32_swap_b32 v66, v67
v_add_f32 v64, v64, v65
v_add_f32 v66, v66, v67
v_mul_f32 v64, {hx(1/512)}, v64
v_mul_f32 v66, {hx(1/512)}, v66
v_fma_f32 v66, -v64, v64, v66
v_max_f32 v66, 0, v66''')
        self.bfr(P, 'v64')
        self.bfr(P, 'v66')
        P(f'v_add_f32 v66, {hx(1e-5)}, v66')
        self.bfr(P, 'v66')
        P('v_sqrt_f32 v66, v66')
        self.bfr(P, 'v66')
        P(f'''
v_rcp_f32 {vNr}, v66
v_mul_f32 {vNc}, -v64, {vNr}'''.replace(f'v_mul_f32 {vNc}', f'v_mul_f32_e64 {vNc}'))
        P(f'''
v_mov_b32 v68, {vNr}
v_mov_b32 v69, {vNc}
ds_write_b64 v109, v[68:69]''')
        P(f'''
s_sub_u32 {sT}, {sMTR}, {sMX}
v_add_u32 {vRa[0]}, {sT}, {vRa[0]}
v_xor_b32 {vRa[1]}, 32, {vRa[0]}''')

        def norm(s_):
            s = S()
            for d in range(0, 4, 2):
                a0, a1 = AB + 4 * s_ + d, AB + 4 * s_ + d + 1
                s(f'''
v_lshlrev_b32 v70, 16, v{a0}
v_and_b32 v71, {sMASK}, v{a0}
v_lshlrev_b32 v72, 16, v{a1}
v_and_b32 v73, {sMASK}, v{a1}
v_fma_f32 v70, v70, {vNr}, {vNc}
v_fma_f32 v71, v71, {vNr}, {vNc}
v_fma_f32 v72, v72, {vNr}, {vNc}
v_fma_f32 v73, v73, {vNr}, {vNc}
v_cvt_pk_bf16_f32 v{a0}, v70, v71
v_cvt_pk_bf16_f32 v{a1}, v72, v73''')
            return s

        need = {
            (0, g): [f'ws{g}'] for g in range(4)}
        for g in range(4):
            need[(1, g)] = [f'wf0E{g}', f'wf0O{g}']
            need[(2, g)] = [f'wf1E{g}', f'wf1O{g}']
            need[(3, g)] = [f'wf2E{g}', f'wf2O{g}']
        self.pre_bar = {}

        def wread(f):
            p, x = f >> 6, f & 63
            s_, m = x >> 1, x & 1
            g = s_ >> 3
            out = []
            if x % 16 == 0:
                if p >= 2 and g == 0:
                    t = S()
                    de, do = ((R1 - R0, 0) if p == 2 else (0, R0 - R2))
                    t(f'v_mov_b32 {vT}, {de if de else do}')
                    if de:
                        t(f'v_cndmask_b32 {vT}, 0, {vT}, {sISE}')
                    else:
                        t(f'v_cndmask_b32 {vT}, {vT}, 0, {sISE}')
                    t(f'v_add_u32 {vW}, {vW}, {vT}')
                    out += list(t)
                out += self.pre_bar.get((p, g), [])
                out.append(waitv(need[(p, g)]))
                out.append(I('s_barrier'))
            ring = 4 * (f % NRING)
            if p == 0:
                cc, jj = (s_ >> 2) & 1, s_ & 3
                out.append(I(f'ds_read_b128 {q("a", ring)}, {vRs[jj&1]} offset:{(4*g + 2*m + cc)*TILE + 64*(jj>>1)}', tok=f'w{f}'))
            else:
                blk = (s_ >> 1) & 3
                for t in range(2):
                    out.append(I(f'ds_read_b64_tr_b16 {q("a", ring + 2*t, 2)}, {vW} offset:{g*8192 + m*4096 + blk*1024 + (s_&1)*512 + t*128}', tok=f'w{f}'))
            return out

        def wmfma(f):
            p, x = f >> 6, f & 63
            s_, m = x >> 1, x & 1
            ring = 4 * (f % NRING)
            if p == 0:
                d = SR + 16 * m
                a, b = q('v', AB + 4 * s_), q('a', ring)
            else:
                d = ACC[(p - 1) & 1] + 16 * m
                a, b = q('a', ring), q('v', AB + 4 * s_)
            cin = '0' if s_ == 0 else q('v', d, 16)
            return I(f'v_mfma_f32_32x32x16_bf16 {q("v", d, 16)}, {a}, {b}, {cin}')

        LA = c.la_w

        def pass_gaps(p, lastread):
            gaps = []
            for x in range(64):
                f = 64 * p + x
                gp = []
                if x % 2 == 0:
                    gp.append(waitl(f'w{f+1}'))
                gp.append(wmfma(f))
                if f + LA < lastread:
                    gp += wread(f + LA)
                gaps.append(gp)
            return gaps
        aft = lambda g: max(0, 16 * g - LA + 1)

        P += norm(0)
        for f in range(LA):
            P += wread(f)
        P += self.stamp('p1 start')
        gaps = pass_gaps(0, 64)
        for s_ in range(31):
            n = norm(s_ + 1)
            gaps[2 * s_] += n[:10]
            gaps[2 * s_ + 1] += n[10:]
        sideA = []
        for g in range(4):
            sideA.append(self.wf_pair(0, 'E', g, R0) + self.wf_pair(1, 'E', g, R1))
        sideB = [self.wf_pair(0, 'O', g, R2) for g in range(4)]
        P += weave(gaps, [(sideA, 4, aft(2) - 1), (sideB, aft(2) + 2, 56)])
        P += self.stamp('p1 end')
        P(f'v_mov_b32 v64, v{SR}\nv_mov_b32 v65, v{SI}')
        for t in range(1, 16):
            a, b = (64, 66) if t & 1 else (66, 64)
            P(f'''
v_fma_f32 v{b}, -{vLi}, v{a+1}, v{SR+t}
v_fma_f32 v{b+1}, {vLi}, v{a}, v{SI+t}
v_fmac_f32 v{b}, {vLr}, v{a}
v_fmac_f32 v{b+1}, {vLr}, v{a+1}''')
        P(f'ds_write_b64 {vExW}, v[66:67]', tok='exw')
        self.pre_bar[(1, 0)] = [waitl('exw')]
        for f in range(64, 64 + LA):
            P += wread(f)
            if f == 64:
                for k in range(4):
                    P(f'ds_read_b128 {q("v", 112 + 4*k)}, {vExR} offset:{16*k}')
        P += self.stamp('p2 start')

        self.b2_pend = []
        self.b2_last_r = [None, None, None]
        H = S()
        H(f'v_mov_b32 v{EB+4}, 0\nv_mov_b32 v{EB+5}, 0')
        for sg in range(1, 8):
            pr, pi = 112 + 2 * (sg - 1), 113 + 2 * (sg - 1)
            er, ei = 112 + 2 * sg, 113 + 2 * sg
            H(f'''
v_cmp_eq_u32 vcc, {sg}, {vSig}
v_fma_f32 v{er}, -{vL16i}, v{pi}, v{er}
v_fmac_f32 v{ei}, {vL16i}, v{pr}
v_cndmask_b32 v{EB+4}, v{EB+4}, v{pr}, vcc
v_cndmask_b32 v{EB+5}, v{EB+5}, v{pi}, vcc
v_fmac_f32 v{er}, {vL16r}, v{pr}
v_fmac_f32 v{ei}, {vL16r}, v{pi}''')
        H = list(H)
        pub = S()
        pub(f'''
v_mov_b32 v{EB}, v126
v_mov_b32 v{EB+1}, v127
v_mov_b32 v{EB+2}, {sTAG}
v_mov_b32 v{EB+3}, {sTAG}
s_lshl_b32 {sT}, {sCG}, 4
s_add_u32 {sT}, {sT}, {sTB}
s_lshl_b32 {sT}, {sT}, 9
s_add_u32 {sT}, {sT}, {EG}
s_cmp_eq_u32 {sWV}, 0
s_cselect_b32 {sT}, {sT}, {OOB}
s_mov_b32 exec_hi, 0
buffer_store_dwordx4 {q("v", EB)}, {vL16}, {SRD_W}, {sT} offen sc1
s_mov_b32 exec_hi, -1''')
        H.append(list(pub))
        K = S()
        self.cmul(K, vPr, vPi, f'v{EB+4}', f'v{EB+5}', vCr, vCi)
        for t in range(16):
            K(f'''
v_mul_f32 v110, v{SI+t}, {vCi}
v_mul_f32 v111, v{SR+t}, {vCi}
v_fma_f32 v{SR+t}, v{SR+t}, {vCr}, -v110
v_fma_f32 v{SI+t}, v{SI+t}, {vCr}, v111''')
        tiles = list(range(19))
        t2 = tiles[:c.b2_p2]
        t3 = tiles[c.b2_p2:c.b2_p2 + c.b2_p3]
        t4 = tiles[c.b2_p2 + c.b2_p3:c.b2_p2 + c.b2_p3 + c.b2_p4]
        t5 = tiles[c.b2_p2 + c.b2_p3 + c.b2_p4:]
        assert max(t4) < 14
        gaps = pass_gaps(1, 256)
        sides = [(H, 0, 15), (list(K), 16, 50), (self.b2_stream(t2), 2, 62)]
        for g in range(3):
            sides.append(([self.wf_pair(1, 'O', g, R2) + self.wf_pair(2, 'O', g, R0)], aft(g + 1) + 2, aft(g + 1) + 2))
        sides.append(([self.wf_pair(1, 'O', 3, R2) + self.wf_pair(2, 'O', 3, R0)], 63, 63))
        P += weave(gaps, sides)
        P += self.stamp('p3 start')

        epi = self.ffn_epi(0, sSTB, 0, 'st0')
        self.add_slow('Le', self.e_loads(), self.e_check())
        el = [list(self.e_loads())]
        ec = list(self.e_check()) + list(S()('s_cbranch_scc1 Le_slow')) + [label('Le_back')]
        cp = S()
        self.cmul(cp, f'v{EB+2}', f'v{EB+3}', f'v{EB}', f'v{EB+1}', vW0r, vW0i)
        cp(f'''
v_fmac_f32 v{EB+2}, v{EB+4}, {vW1r}
v_fmac_f32 v{EB+3}, v{EB+4}, {vW1i}
v_fma_f32 v{EB+2}, -v{EB+5}, {vW1i}, v{EB+2}
v_fmac_f32 v{EB+3}, v{EB+5}, {vW1r}
v_and_b32 v{EB}, 0x1f0, {vL16}
v_lshlrev_b32 v{EB}, 2, v{EB}
v_add_u32 v{EB}, {CP}, v{EB}
v_lshrrev_b32 v{EB+1}, 9, {vL16}
v_lshl_add_u32 v{EB+1}, {sWV}, 1, v{EB+1}
v_lshl_add_u32 v{EB+1}, v{EB+1}, 3, v{EB}''')
        cp(f'ds_write_b64 v{EB+1}, v[{EB+2}:{EB+3}]', tok='cpw')
        self.pre_bar[(2, 2)] = [waitl('cpw')]
        U0 = ACC[0] + 16
        rs = S()
        for k in range(4):
            rs(f'ds_read_b128 {q("v", U0 + 4*k)}, v{EB} offset:{16*k}')
        for st_ in (8, 4, 2):
            for k in range(st_):
                rs(f'v_add_f32 v{U0+k}, v{U0+k}, v{U0+k+st_}')
        rs(f'''
v_fmac_f32 {vPr}, v{U0}, {vMr}
v_fmac_f32 {vPi}, v{U0}, {vMi}
v_fma_f32 {vPr}, -v{U0+1}, {vMi}, {vPr}
v_fmac_f32 {vPi}, v{U0+1}, {vMr}''')
        for t in range(16):
            hr, hi = (vPr, vPi) if t == 0 else (f'v{SR+t-1}', f'v{SI+t-1}')
            rs(f'''
v_fma_f32 v{SR+t}, -{vLi}, {hi}, v{SR+t}
v_fmac_f32 v{SI+t}, {vLi}, {hr}
v_fmac_f32 v{SR+t}, {vLr}, {hr}
v_fmac_f32 v{SI+t}, {vLr}, {hi}''')
            if t & 1:
                k = t >> 1
                rs(f'v_cvt_pk_bf16_f32 v{U0+k}, v{SR+t-1}, v{SR+t}')
                rs(f'v_cvt_pk_bf16_f32 v{U0+8+k}, -v{SI+t-1}, -v{SI+t}')
        b2s3 = self.b2_stream(t3)
        if len(self.b2_pend) >= 2:
            pass
        slot = self.tslot % 3
        self.tslot += 1
        tw = []
        if self.b2_last_r[slot] is not None:
            tw.append(waitl(self.b2_last_r[slot]))
        self.b2_last_r[slot] = 'htr'
        x = S()
        x(f'''
s_add_u32 {sT}, {sMTR}, {slot*TILE}
v_and_b32 v{EB}, 0x1f0, {vL16}
v_lshlrev_b32 v{EB}, 2, v{EB}
v_lshrrev_b32 v{EB+1}, 9, {vL16}
v_lshl_add_u32 v{EB}, v{EB+1}, 5, v{EB}
v_add_u32 v{EB}, {sT}, v{EB}
v_bfe_u32 v{EB+2}, {vL16}, 6, 2
v_lshl_add_u32 v{EB+2}, v{EB+1}, 3, v{EB+2}
v_bfe_u32 v{EB+3}, {vL16}, 8, 1
v_lshl_add_u32 v{EB+2}, v{EB+2}, 1, v{EB+3}
v_bfe_u32 v{EB+3}, {vL16}, 4, 2
v_lshl_add_u32 v{EB+2}, v{EB+2}, 2, v{EB+3}
v_lshl_add_u32 v{EB+2}, v{EB+2}, 3, {sT}''')
        tw.append(list(x))
        x = S()
        for k in range(4):
            x(f'ds_write_b128 v{EB}, {q("v", U0 + 4*k)} offset:{(k>>1)*2048 + (k&1)*16}')
        for s_ in range(4):
            for t in range(2):
                x(f'ds_read_b64_tr_b16 {q("v", SR + 4*s_ + 2*t, 2)}, v{EB+2} offset:{s_*1024 + t*256}', tok='htr')
        tw += list(x)
        x = S()
        x(f'''
s_lshl_b32 {sT2}, {sCG}, 12
s_add_u32 {sT}, {sSTB}, {sT2}
s_add_u32 {sT}, {sT}, {32*2048}
s_add_u32 {sT2}, {sT}, 4096''')
        for s_ in range(4):
            x(f'buffer_store_dwordx4 {q("v", SR + 4*s_)}, {vL16}, {SRD_W}, {sT if s_ < 2 else sT2} offen offset:{(s_&1)*2048} sc1', tok='st1')
        hst = [list(x)]
        gaps = pass_gaps(2, 256)
        b32 = aft(2) - 1
        sides = [(el, 1, 1), (epi, 2, b32 - 4), ([ec], b32 - 3, b32 - 3), (list(cp), b32 - 3, b32 - 1),
                 (b2s3, 3, 52), (list(rs), b32 + 1, 54), (tw, 55, 59), (hst, 62, 62),
                 ([self.flag_store('st0', sFLA, 0)], 61, 61)]
        for g in range(3):
            sides.append(([self.wf_pair(2, 'E', g, R1)], aft(g + 1) + 2, aft(g + 1) + 2))
        sides.append(([self.wf_pair(2, 'E', 3, R1)], 63, 63))
        P += weave(gaps, sides)
        P += self.stamp('p4 start')

        stage_of = lambda k: 0 if k < 8 else 1 if k < 24 else 2 if k < 32 else 3
        vFL = f'v{EB}'

        def a2load(k):
            out = []
            s = S()
            if k % 2 == 0:
                if k in (0, 8, 24, 32):
                    st_ = stage_of(k)
                    out += self.fl_gate(vFL, st_)
                    kb, mul = {0: (0, 8), 8: (32, 16), 24: (96, 8), 32: (128, 6)}[k]
                    s(f's_mul_i32 {sA2}, {sWV}, {mul*2048}')
                    s(f's_add_u32 {sA2}, {sA2}, {sA2B}')
                    if kb:
                        s(f's_add_u32 {sA2}, {sA2}, {kb*2048}')
                elif k == 36:
                    s(f's_add_u32 {sA2}, {sA2}, 4096')
                    s(f's_cmp_eq_u32 {sWV}, 3')
                    s(f's_cselect_b32 {sA2}, {OOB}, {sA2}')
                else:
                    s(f's_add_u32 {sA2}, {sA2}, 4096')
            for mb in range(2):
                s(f'buffer_load_dwordx4 {q("v", AB + 8*(k&15) + 4*mb)}, {vL16}, {SRD_W}, {sA2} offen offset:{(k&1)*2048 + mb*1024} sc1', tok=f'a2_{k}')
            return out + list(s)

        epi = self.ffn_epi(1, sSTB, 96 * 2048, 'st2')
        gaps = pass_gaps(3, 256)
        sides = [(epi, 2, 40), (self.b2_stream(t4), 1, 62), ([self.flag_store('st1', sFLA, 32)], 39, 39)]
        sides.append(([list(self.fl_load(vFL))], 44, 44))
        P += weave(gaps, sides)
        P += self.stamp('p4 end')

        LA2 = c.la_a2
        for k in range(LA2):
            P += a2load(k)
            if k == 0:
                P += self.fl_load(vFL)
        acc2 = [[SR, SI], [ACC[1], ACC[1] + 16]]
        gaps = []
        for k in range(38):
            for mb in range(2):
                for nb in range(2):
                    d = acc2[mb][nb]
                    ar, t = b2frag(k, nb)
                    cin = '0' if k == 0 else q('v', d, 16)
                    gp = []
                    if mb == 0 and nb == 0:
                        gp.append(waitv(f'a2_{k}'))
                    gp.append(I(f'v_mfma_f32_32x32x16_bf16 {q("v", d, 16)}, {q("v", AB + 8*(k&15) + 4*mb)}, {q("a", ar)}, {cin}'))
                    if mb == 0 and nb == 0 and k + LA2 < 38:
                        gp += a2load(k + LA2)
                        if k + LA2 in (16, 26):
                            gp += list(self.fl_load(vFL))
                    gaps.append(gp)
        epi = self.ffn_epi(0, sST4, 128 * 2048, 'st3')
        pre = []
        for it in epi:
            pre += it if isinstance(it, list) else [it]
        early = [t for t in t5 if t < 16]
        late = [t for t in t5 if t >= 16]
        P += self.flag_store('st2', sFLA, 64)
        P += pre
        fl = self.b2_stream([], flush=True)
        for it in fl:
            P += it if isinstance(it, list) else [it]
        P('s_barrier')
        P += self.stamp('ph2 start')
        F = ACC[0]
        E = S()
        E(f'''
v_lshrrev_b32 v{EB+1}, 8, {vL16}
v_and_b32 v{EB+2}, 1, v{EB+1}
v_lshrrev_b32 v{EB+1}, 1, v{EB+1}
v_lshl_add_u32 v{EB+3}, v{EB+2}, 2, v{EB+1}
s_lshl_b32 {sT2}, {sWV}, 4
v_add_u32 v{EB+3}, {sT2}, v{EB+3}
v_and_b32 v{EB+4}, 0xf0, {vL16}
s_lshl_b32 {sT2}, {sNT}, 8
v_add_u32 v{EB+5}, {sT2}, v{EB+4}
s_lshl_b32 {sT2}, {sMT}, 6
v_add_u32 v{EB+6}, {sT2}, v{EB+3}
v_lshl_add_u32 v14, v{EB+6}, 11, v{EB+5}
v_lshrrev_b32 v15, 1, v14
v_lshrrev_b32 v{EB+5}, 1, v{EB+5}
s_mov_b32 s18, 8192
s_mov_b32 s19, 4096
s_mov_b32 s20, 16384
s_mov_b32 s21, 20480''')
        E2 = S()
        for u in range(4):
            E2(f'buffer_load_dwordx2 {q("v", F + 16 + 2*u, 2)}, v15, {SRD_X}, {"s18" if u >> 1 else "0"} offen offset:{(u&1)*2048}')
        E2(f'global_load_dwordx2 v[16:17], v{EB+5}, s[32:33]')
        E3 = S()
        E3(f'''
v_and_b32 v{EB+6}, 127, v{EB+6}
v_lshlrev_b32 v{EB+6}, 3, v{EB+6}
v_add_u32 v{EB+6}, {ST}, v{EB+6}''')
        for u in range(4):
            E3(f'ds_read_b64 {q("v", F + 24 + 2*u, 2)}, v{EB+6} offset:{(8*(u>>1) + 2*(u&1))*8}')
        E3(f'''
v_and_b32 v22, 0x70, {vL16}
v_lshl_add_u32 v22, v{EB+2}, 7, v22
v_lshl_add_u32 v22, v{EB+1}, 8, v22
v_bfe_u32 v23, {vL16}, 7, 1
v_lshl_add_u32 v22, v23, 12, v22
s_lshr_b32 {sT2}, {sWV}, 1
s_lshl_b32 {sT2}, {sT2}, 13
s_and_b32 {sT3}, {sWV}, 1
s_lshl_b32 {sT3}, {sT3}, 11
s_add_u32 {sT2}, {sT2}, {sT3}
v_add_u32 v22, {sT2}, v22''')
        E4 = S()
        E4(f'''
v_lshlrev_b32 v18, 16, v16
v_and_b32 v19, {sMASK}, v16
v_lshlrev_b32 v20, 16, v17
v_and_b32 v21, {sMASK}, v17''')
        for u in range(4):
            for e in range(4):
                src = F + 16 + 2 * u + (e >> 1)
                d = F + 4 * u + e
                if e & 1:
                    E4(f'v_and_b32 v{d}, {sMASK}, v{src}')
                else:
                    E4(f'v_lshlrev_b32 v{d}, 16, v{src}')
                E4(f'v_fma_f32 {vX1}, v{d}, v{F+24+2*u}, v{F+25+2*u}')
                E4(f'v_fmac_f32 v{d}, {vX1}, v{18+e}')
        sides = [([list(E)], 8, 8), ([list(E2)], 10, 10), (list(E3), 12, 20), (list(E4), 60, 110),
                 ([self.flag_store('st3', sFL4, 96)], 30, 30),
                 (self.b2_stream(early), 1, 30), (self.b2_stream(late, flush=True), 34, 90)]
        P += weave(gaps, sides)
        P += self.stamp('ph2 end')

        P(f's_lshl_b32 m0, {sWV}, 14')
        for mb in range(2):
            for nb in range(2):
                for r in range(16):
                    P(f'ds_write_addtid_b32 v{acc2[mb][nb] + r} offset:{((mb*2+nb)*16 + r)*256}')
        P.append(waitl())
        P('s_barrier')
        for u in range(4):
            for p in range(4):
                P(f'ds_read_b128 {q("v", AB + 16*u + 4*p)}, v22 offset:{p*16384 + (4*(u>>1) + 2*(u&1))*256}')
        so = ['0', 's19', 's20', 's21']
        for u in range(4):
            b = AB + 16 * u
            for hh in range(2):
                P(f'v_pk_add_f32 {q("v", b+2*hh, 2)}, {q("v", b+2*hh, 2)}, {q("v", b+4+2*hh, 2)}')
                P(f'v_pk_add_f32 {q("v", b+8+2*hh, 2)}, {q("v", b+8+2*hh, 2)}, {q("v", b+12+2*hh, 2)}')
            for hh in range(2):
                P(f'v_pk_add_f32 {q("v", b+2*hh, 2)}, {q("v", b+2*hh, 2)}, {q("v", F+4*u+2*hh, 2)}')
            for hh in range(2):
                P(f'v_pk_add_f32 {q("v", b+2*hh, 2)}, {q("v", b+2*hh, 2)}, {q("v", b+8+2*hh, 2)}')
            P(f'buffer_store_dwordx4 {q("v", b)}, v14, {SRD_O}, {so[u]} offen {c.out_flags}')
        P(f'''
s_cmp_eq_u32 s2, 255
s_cselect_b32 {sT}, {EP}, {OOB}
v_mov_b32 {vT}, {sTAG}
s_mov_b64 exec, 1
buffer_store_dword {vT}, off, {SRD_W}, {sT} sc1
s_mov_b64 exec, -1''')
        if c.prof:
            P('s_waitcnt vmcnt(0)')
            P += self.stamp('end')
            P(f'''
s_memrealtime s[0:1]
s_waitcnt lgkmcnt(0)
v_writelane_b32 {self.vprof}, s0, 62
v_writelane_b32 {self.vprof}, {sSPIN}, 63
s_lshl_b32 {sT}, s2, 2
s_add_u32 {sT}, {sT}, {sWV}
s_lshl_b32 {sT}, {sT}, 8
s_add_u32 {sT}, {sT}, {PROF}
v_lshrrev_b32 {vT}, 2, {vL16}
buffer_store_dword {self.vprof}, {vT}, {SRD_W}, {sT} offen''')
        P.append(label('Lend'))
        P('s_endpgm')
        body = self.finalize(P)
        return body + ''.join(self.slow)


def emit(cfg, path):
    ref = open('parallel_sum__ssm_conv_s5__geglu_ffn__prompt.s.ref').read()
    head = []
    for l in ref.split('\n'):
        if l.startswith(';') and '@launch' not in l:
            head.append(l)
        elif not l.startswith(';'):
            break
    g = Gen(cfg)
    body = g.build()
    txt = '\n'.join(head) + f'\n; @launch grid=(256,1,1) block=(256,1,1) lds={LDS_BYTES}\n'
    txt += f'''.amdgcn_target "amdgcn-amd-amdhsa--gfx950"
.text
.globl {KN}
.p2align 8
.type {KN},@function
{KN}:
{body}
.section .rodata,"a"
.p2align 6
.amdhsa_kernel {KN}
  .amdhsa_next_free_vgpr 512
  .amdhsa_next_free_sgpr 102
  .amdhsa_accum_offset 256
  .amdhsa_group_segment_fixed_size 0
  .amdhsa_kernarg_size 128
  .amdhsa_user_sgpr_count 2
  .amdhsa_user_sgpr_kernarg_segment_ptr 1
  .amdhsa_system_sgpr_workgroup_id_x 1
.end_amdhsa_kernel
'''
    open(path, 'w').write(txt)
    return g


if __name__ == '__main__':
    cfg = Cfg()
    for a in sys.argv[2:]:
        k, v = a.split('=')
        cur = getattr(Cfg, k)
        setattr(cfg, k, v if isinstance(cur, str) else type(cur)(int(v)))
    g = emit(cfg, sys.argv[1])
    if cfg.prof:
        open(sys.argv[1] + '.stamps', 'w').write('\n'.join(g.stamp_names))
```

```python
import re

RE_REG = re.compile(r'^(-|\|)?(abs\()?([vas])(\d+|\[(\d+):(\d+)\])\)?\|?$')


def regs_of(tok):
    tok = tok.strip()
    if tok == 'vcc':
        return {'vcc'}
    if tok == 'exec':
        return {'exec'}
    if tok == 'm0':
        return {'m0'}
    m = RE_REG.match(tok)
    if not m:
        return set()
    f = m.group(3)
    if m.group(5) is not None:
        return {f + str(i) for i in range(int(m.group(5)), int(m.group(6)) + 1)}
    return {f + m.group(4)}


def split_ops(s):
    out, depth, cur = [], 0, ''
    for ch in s:
        if ch in '[(':
            depth += 1
        if ch in '])':
            depth -= 1
        if ch == ',' and depth == 0:
            out.append(cur.strip())
            cur = ''
        else:
            cur += ch
    if cur.strip():
        out.append(cur.strip())
    return out


TRANS = ('v_exp_f32', 'v_log_f32', 'v_rcp_f32', 'v_rsq_f32', 'v_sqrt_f32', 'v_sin_f32', 'v_cos_f32')


class I:
    def __init__(self, text, tok=None, pseudo=None, arg=None):
        self.text = text
        self.tok = tok
        self.pseudo = pseudo
        self.arg = arg
        self.defs = set()
        self.uses = set()
        self.srcc = set()
        self.kind = 'other'
        if pseudo is None:
            self.parse()

    def parse(self):
        t = self.text.split(';')[0].strip()
        parts = t.split(None, 1)
        op = parts[0]
        self.op = op
        rest = parts[1] if len(parts) > 1 else ''
        ops = split_ops(rest)
        mods = ''
        if ops:
            lp = ops[-1].split(None, 1)
            ops[-1] = lp[0]
            mods = lp[1] if len(lp) > 1 else ''
        self.mods = mods
        R = [regs_of(o) for o in ops]
        U = lambda idx: set().union(*[R[i] for i in idx if i < len(R)]) if idx else set()
        n = len(R)
        if op.startswith('v_mfma'):
            self.kind = 'mfma'
            self.defs = R[0]
            self.uses = U([1, 2, 3])
            self.srcab = U([1, 2])
            self.srcc = R[3]
        elif op.startswith('v_cmp'):
            self.kind = 'valu'
            self.defs = R[0]
            self.uses = U(range(1, n))
        elif op.startswith('v_readfirstlane') or op.startswith('v_readlane'):
            self.kind = 'valu'
            self.defs = R[0]
            self.uses = U(range(1, n))
        elif op.startswith('v_permlane'):
            self.kind = 'valu'
            self.defs = R[0] | R[1]
            self.uses = R[0] | R[1]
        elif op.startswith('v_'):
            self.kind = 'valu'
            base = op.replace('_e32', '').replace('_e64', '').replace('_dpp', '')
            if base in TRANS:
                self.kind = 'trans'
            self.defs = set(R[0])
            self.uses = U(range(1, n))
            if base.startswith(('v_fmac', 'v_dot2c', 'v_writelane')) or op.endswith('_dpp'):
                self.uses |= R[0]
            if base.startswith(('v_add_co', 'v_addc_co', 'v_sub_co')):
                self.defs |= R[1]
        elif op.startswith('ds_read'):
            self.kind = 'dsr'
            self.defs = R[0]
            self.uses = U(range(1, n))
        elif op.startswith('ds_write'):
            self.kind = 'dsw'
            self.uses = U(range(0, n))
            if 'addtid' in op:
                self.uses |= {'m0'}
        elif op.startswith('buffer_load') or op.startswith('global_load'):
            if re.search(r'\blds\b', mods):
                self.kind = 'dma'
                self.uses = U(range(0, n)) | {'m0'}
            else:
                self.kind = 'vld'
                self.defs = R[0]
                self.uses = U(range(1, n))
        elif op.startswith('buffer_store') or op.startswith('global_store'):
            self.kind = 'vst'
            self.uses = U(range(0, n))
            self.stdata = R[0] if op.startswith('buffer') else R[1]
            self.wide = op.endswith(('x3', 'x4'))
        elif op.startswith('s_load') or op in ('s_memtime', 's_memrealtime'):
            self.kind = 'smem'
            self.defs = R[0]
            self.uses = U(range(1, n))
        elif op in ('s_waitcnt', 's_barrier', 's_nop', 's_endpgm', 's_setprio', 's_branch', 's_sleep') or op.startswith('s_cbranch'):
            self.kind = 'ctl'
            if op.startswith('s_cbranch_vcc'):
                self.uses = {'vcc'}
        elif op.startswith('s_cmp') or op.startswith('s_bitcmp'):
            self.kind = 'salu'
            self.uses = U(range(0, n))
        elif op.startswith('s_'):
            self.kind = 'salu'
            self.defs = R[0]
            self.uses = U(range(1, n))
        else:
            raise ValueError('unknown op ' + t)

    def states(self):
        if self.pseudo:
            return 0
        if self.op == 's_nop':
            return int(self.text.split()[1]) + 1
        return 1


def waitv(tok):
    return I('', pseudo='waitv', arg=tok)


def waitl(tok=None):
    return I('', pseudo='waitl', arg=tok)


def label(name):
    return I(name + ':', pseudo='label')


def comment(s):
    return I('; ' + s, pseudo='raw')


class S(list):
    def __call__(self, text, tok=None):
        for l in text.strip().split('\n'):
            l = l.strip()
            if not l or l.startswith(';'):
                continue
            self.append(I(l, tok=tok))
        return self


def insert_waits(prog):
    out = []
    vq = []
    lq = []
    smem_pending = set()
    seen_tok = set()

    def emit_wait(vn, ln):
        parts = []
        if vn is not None:
            parts.append(f'vmcnt({min(vn, 63)})')
        if ln is not None:
            parts.append(f'lgkmcnt({min(ln, 15)})')
        if not parts:
            return
        if out and out[-1].pseudo is None and out[-1].op == 's_waitcnt' and getattr(out[-1], 'auto', False):
            p = out.pop()
            pv, pl = p.vn, p.ln
            if pv is not None:
                vn = pv if vn is None else min(vn, pv)
            if pl is not None:
                ln = pl if ln is None else min(ln, pl)
            parts = []
            if vn is not None:
                parts.append(f'vmcnt({min(vn, 63)})')
            if ln is not None:
                parts.append(f'lgkmcnt({min(ln, 15)})')
        w = I('s_waitcnt ' + ' '.join(parts))
        w.auto = True
        w.vn, w.ln = vn, ln
        out.append(w)

    def retire(q, idx, cap):
        n = min(len(q) - 1 - idx, cap)
        del q[:len(q) - n]
        return n

    for ins in prog:
        if ins.pseudo == 'waitv':
            toks = ins.arg if isinstance(ins.arg, (list, tuple)) else [ins.arg]
            for t in toks:
                assert t is None or t in seen_tok, f'waitv on unseen token {t}'
            idx = -1
            for i, o in enumerate(vq):
                if ins.arg is None or o.tok in toks:
                    idx = i
            if idx >= 0:
                emit_wait(retire(vq, idx, 63), None)
            continue
        if ins.pseudo == 'waitl':
            assert ins.arg is None or ins.arg in seen_tok, f'waitl on unseen token {ins.arg}'
            idx = -1
            for i, o in enumerate(lq):
                if ins.arg is None or o.tok == ins.arg:
                    idx = i
            if ins.arg is None and smem_pending:
                emit_wait(None, 0)
                smem_pending.clear()
                lq.clear()
            elif idx >= 0:
                emit_wait(None, retire(lq, idx, 15))
            continue
        if ins.pseudo:
            out.append(ins)
            continue
        touch = ins.uses | ins.defs
        vn = ln = None
        idx = -1
        for i, o in enumerate(vq):
            if o.defs & touch:
                idx = i
        if idx >= 0:
            vn = retire(vq, idx, 63)
        if smem_pending & touch:
            ln = 0
            smem_pending.clear()
            lq.clear()
        else:
            idx = -1
            for i, o in enumerate(lq):
                if o.defs & touch:
                    idx = i
            if idx >= 0:
                if smem_pending:
                    ln = 0
                    smem_pending.clear()
                    lq.clear()
                else:
                    ln = retire(lq, idx, 15)
        if vn is not None or ln is not None:
            emit_wait(vn, ln)
        if ins.op == 's_waitcnt':
            m = re.search(r'vmcnt\((\d+)\)', ins.text)
            if m:
                n = int(m.group(1))
                if len(vq) > n:
                    del vq[:len(vq) - n]
            m = re.search(r'lgkmcnt\((\d+)\)', ins.text)
            if m:
                n = int(m.group(1))
                if n == 0:
                    smem_pending.clear()
                if not smem_pending and len(lq) > n:
                    del lq[:len(lq) - n]
        out.append(ins)
        if ins.tok is not None:
            seen_tok.add(ins.tok)
        if ins.kind in ('dma', 'vld', 'vst'):
            vq.append(ins)
        elif ins.kind in ('dsr', 'dsw'):
            lq.append(ins)
        elif ins.kind == 'smem':
            smem_pending |= ins.defs
    return out


def isv(r):
    return r[0] in 'va' and r != 'vcc'


def iss(r):
    return r[0] == 's' or r == 'vcc'


def need_states(p, c):
    n = 0
    pv = p.kind in ('valu', 'trans')
    cv = c.kind in ('valu', 'trans')
    cmem = c.kind in ('dma', 'vld', 'vst', 'dsr', 'dsw')
    if pv:
        vd = {r for r in p.defs if isv(r)}
        sd = {r for r in p.defs if iss(r)}
        if c.kind == 'mfma' and vd & c.uses:
            n = max(n, 2)
        if cv and c.op.startswith('v_permlane') and vd & c.uses:
            n = max(n, 2)
        if cv and c.op.endswith('_dpp') and vd & c.uses:
            n = max(n, 2)
        if cv and c.op.startswith(('v_readfirstlane', 'v_readlane')) and vd & c.uses:
            n = max(n, 1)
        if p.kind == 'trans' and (cv or cmem or c.kind == 'mfma') and vd & c.uses:
            n = max(n, 1)
        if sd and c.kind in ('dma', 'vld', 'vst') and sd & c.uses:
            n = max(n, 5)
        if sd and cv and sd & c.uses:
            n = max(n, 4 if c.op.startswith(('v_readlane', 'v_writelane')) else 2)
        if sd and c.kind in ('salu', 'ctl') and sd & c.uses:
            n = max(n, 1)
        if p.op.startswith('v_dot2'):
            if vd & (c.uses | c.defs):
                same = c.pseudo is None and c.op == p.op
                if same and not (vd & (c.uses - c.defs)):
                    pass
                else:
                    n = max(n, 3)
    if p.kind == 'mfma':
        if c.kind == 'mfma':
            if p.defs & c.srcab:
                n = max(n, 12)
            if p.defs & c.srcc and p.defs != c.srcc:
                n = max(n, 10)
            if p.defs & c.defs and p.defs != c.srcc:
                n = max(n, 10)
        elif (cv or cmem) and p.defs & (c.uses | c.defs):
            n = max(n, 12)
        if cv and p.srcc & c.defs:
            n = max(n, 7)
    if p.kind == 'salu' and 'm0' in p.defs and 'm0' in c.uses and cmem:
        n = max(n, 1)
    if p.kind == 'vst' and p.wide and (p.stdata & c.defs):
        n = max(n, 2)
    return n


def insert_nops(prog):
    out = []
    for ins in prog:
        if ins.pseudo is None:
            dist = 0
            need = 0
            for p in reversed(out):
                if p.pseudo:
                    continue
                r = need_states(p, ins) - dist
                need = max(need, r)
                dist += p.states()
                if dist >= 14:
                    break
            if need > 0:
                out.append(I(f's_nop {need - 1}'))
        out.append(ins)
    return out


def render(prog):
    L = []
    for i in prog:
        if i.pseudo in ('label', 'raw'):
            L.append(i.text)
        elif i.pseudo is None:
            L.append('  ' + i.text)
        else:
            raise ValueError('unresolved pseudo')
    return '\n'.join(L) + '\n'


def cost(ins):
    if ins.pseudo in ('waitv', 'waitl'):
        return 1
    if ins.pseudo:
        return 0
    if ins.kind == 'trans':
        return 2
    if ins.kind in ('dma', 'vld', 'vst'):
        return 2
    if ins.kind == 'mfma':
        return 2
    return 1


def weave(gaps, sides):
    extra = [[] for _ in gaps]
    for stream, g0, g1 in sides:
        items = [it if isinstance(it, list) else [it] for it in stream]
        if not items:
            continue
        costs = [sum(cost(x) for x in it) for it in items]
        total = sum(costs)
        ng = g1 - g0 + 1
        acc = 0
        for it, c in zip(items, costs):
            g = g0 + min(ng - 1, int(acc * ng / total)) if total else g0
            extra[g].extend(it)
            acc += c
    out = []
    for g, e in zip(gaps, extra):
        out.extend(g)
        out.extend(e)
    return out


WIDEN = ('v_mul_f32', 'v_add_f32', 'v_sub_f32', 'v_fmac_f32', 'v_lshlrev_b32', 'v_lshrrev_b32', 'v_and_b32',
         'v_or_b32', 'v_xor_b32', 'v_mov_b32', 'v_exp_f32', 'v_rcp_f32', 'v_add_u32', 'v_sub_u32', 'v_max_f32',
         'v_cndmask_b32', 'v_sin_f32', 'v_cos_f32', 'v_rndne_f32', 'v_cvt_f32_u32', 'v_max_i32')


def align_fix(text):
    import subprocess
    open('_al.s', 'w').write('.amdgcn_target "amdgcn-amd-amdhsa--gfx950"\n.text\n' + text)
    subprocess.run(['clang', '-x', 'assembler', '-target', 'amdgcn-amd-amdhsa', '-mcpu=gfx950',
                    '-c', '_al.s', '-o', '_al.o'], check=True)
    dis = subprocess.run(['llvm-objdump', '-d', '--mcpu=gfx950', '_al.o'],
                         capture_output=True, text=True).stdout
    sizes = []
    for l in dis.split('\n'):
        m = re.match(r'\s+(\S+).*?//\s*([0-9A-F]+): ([0-9A-F ]+)', l)
        if m:
            sizes.append(4 * len(m.group(3).split()))
    lines = text.split('\n')
    idx = [i for i, l in enumerate(lines) if l.startswith('  ')]
    assert len(idx) == len(sizes), (len(idx), len(sizes))
    INF = 10 ** 9
    best = [INF] * 8
    best[0] = 0
    back = []
    for i, sz in zip(idx, sizes):
        op = lines[i].split()[0]
        opts = [sz]
        if sz == 4 and op in WIDEN:
            opts.append(8)
        nb = [INF] * 8
        bk = [None] * 8
        for st in range(8):
            if best[st] >= INF:
                continue
            for o in opts:
                c = best[st] + (1000 if st * 4 + o > 32 else 0) + (1 if o != sz else 0)
                ns = (st + o // 4) % 8
                if c < nb[ns]:
                    nb[ns] = c
                    bk[ns] = (st, o)
        best = nb
        back.append(bk)
    st = min(range(8), key=lambda s: best[s])
    for k in range(len(idx) - 1, -1, -1):
        ps, o = back[k][st]
        if o != sizes[k]:
            l = lines[idx[k]]
            op = l.split()[0]
            lines[idx[k]] = l.replace(op, op + '_e64', 1)
        st = ps
    return '\n'.join(lines)
```

```python
from ir import *


class VM:
    def __init__(self, op, pre=(), m0=None, cost=68, lat=950, w=1, earliest=0, after_done=None, needs=None, name=None):
        self.op, self.pre, self.m0 = op, list(pre), m0
        self.cost, self.lat, self.w = cost, lat, w
        self.earliest = earliest
        self.after_done = after_done
        self.needs = needs
        self.name = name


class Model:
    alpha = 1.0
    slat = 1300

    def __init__(self):
        self.t = 0
        self.mfree = 0
        self.done = {}
        self.next_ok = 0
        self.clast = 0
        self.stall = 0
        self.nvm = 0

    def can_issue_at(self, w):
        return self.next_ok

    def step(self, ins, vm=None):
        if ins.pseudo == 'waitv':
            toks = ins.arg if isinstance(ins.arg, (list, tuple)) else [ins.arg]
            c = max(self.done[t] for t in toks)
            if c > self.t:
                self.stall += c - self.t
                self.t = c
            self.t += 4
            return
        if ins.pseudo == 'waitl':
            self.t += 4
            return
        if ins.pseudo:
            return
        if ins.kind == 'mfma':
            self.t = max(self.t, self.mfree)
            self.mfree = self.t + 32
            self.t += 8
        elif ins.kind in ('dma', 'vld', 'vst'):
            if vm is None:
                if ins.kind == 'vst':
                    cost, lat = (170, self.slat) if ins.wide else (20, 1100)
                else:
                    cost, lat = 40, 950
            else:
                cost, lat = vm.cost, vm.lat
            if vm is not None and self.next_ok - 130 > self.t:
                self.stall += self.next_ok - 130 - self.t
                self.t = self.next_ok - 130
            self.next_ok = int(max(self.next_ok, self.t - 16) + cost * self.alpha)
            c = max(self.clast, self.t + lat)
            self.clast = c
            self.nvm += 1
            if ins.tok is not None:
                self.done[ins.tok] = c
            self.t += 8
        elif ins.kind == 'trans':
            self.t += 8
        else:
            self.t += 4
```

```python
import sys, struct, math
from ir import *
from sched import *

KN = 'parallel_sum__ssm_conv_s5__geglu_ffn__prompt_kernel'


def f2u(x):
    return struct.unpack('<I', struct.pack('<f', x))[0]


def hx(x):
    return hex(f2u(x))


class Cfg:
    prof = False
    la_w = 5
    alpha = 100
    lat = 950
    slat = 1300
    rmargin = 100
    poll0 = 40
    align = 1
    codepf = 1
    pf = ''
    verbose = 0
    ablate = ''
    prof2 = 0
    a2flags = 'sc1'
    chop0 = 16
    nearly = 10
    epi4 = 40
    tlead = 24
    pollead = 7
    ahead = 8
    out_flags = ''
    spin = 200000


EP = 0
FL = 4096
EG = 32768
A2 = 262144
MT_STRIDE = 152 * 2048
WS_BYTES = A2 + 32 * MT_STRIDE
PROF = 0x1000000
OOB = 0x40000000
TILE = 4352
R0, R1, R2 = 0, 33024, 66048
WSSM = 69632
TRANS0 = 81664
SLOT = 4 * TILE
ST = 151296
CP = 152320
EX = 154368
TB = 154368
LDS_BYTES = 163840
sT, sWV, sTB, sCG, sMT, sNT, sB0, sTAG, sT2 = 's3', 's4', 's5', 's6', 's7', 's8', 's9', 's10', 's11'
sT3, sT4 = 's12', 's13'
sISE = 's[14:15]'
SRD_X, SRD_S, SRD_F, SRD_CR, SRD_CI, SRD_D, SRD_W, SRD_O = [f's[{48+4*i}:{51+4*i}]' for i in range(8)]
sCX = ['0', 's80', 's81', 's82']
sCT = ['0', 's83', 's84', 's85']
sGX = ['s86', 's87', 's88', 's89']
sGF = ['s90', 's91', 's92', 's93']
sBC = {(0, 'E'): 's22', (0, 'O'): 's23', (1, 'E'): 's24', (1, 'O'): 's25', (2, 'E'): 's26', (2, 'O'): 's27'}
sWD = ['s34', 's35', 's36', 's37', 's38', 's39', 's40', 's41', 's42', 's43', 's44']
sMX, sMF, sMTR, sMS = 's28', 's29', 's45', 's46'
sSTB = 's47'
sST4 = 's94'
sFLA = 's95'
sFL4 = 's96'
sA2 = 's97'
sFLC = 's98'
sM3 = 's99'
sSPIN = 's100'
sA2B = 's101'
sD, sS = 's30', 's31'
sMASK = 's16'
sONE = 's17'
vT, vL16, vPatC, vPatD, vPatF, vX0 = 'v0', 'v1', 'v2', 'v3', 'v4', 'v5'
vRa = ['v6', 'v7']
vRd = ['v8', 'v9']
vW, vStH, vK2, vX1 = 'v10', 'v11', 'v12', 'v13'
vLr, vLi, vMr, vMi, vPr, vPi = 'v14', 'v15', 'v16', 'v17', 'v18', 'v19'
vW0r, vW0i, vW1r, vW1i = 'v20', 'v21', 'v22', 'v23'
EB = 24
vTAG = 'v31'
SR, SI = 32, 48
ACC = [64, 96]
AB = 128
vL16r, vL16i, vCr, vCi, vSig, vExW, vExR = 'v96', 'v97', 'v98', 'v99', 'v100', 'v101', 'v102'
vRs = ['v103', 'v104']
vNr, vNc = 'v105', 'v106'
vPatX, vPatS = 'v107', 'v108'


def q(f, b, n=4):
    return f'{f}[{b}:{b+n-1}]'


def tile_slot_areg(t):
    if t < 14:
        return 32 + 16 * t
    if t < 16:
        return 16 * (t - 14)
    return 32 + 16 * (t - 16)


def b2frag(kap, nb):
    if kap < 8:
        t, f = kap >> 1, (kap & 1) * 2 + nb
    elif kap < 24:
        x = kap - 8
        cgl, s = x >> 2, x & 3
        cc, m = cgl >> 1, s >> 1
        jj = (cgl & 1) * 2 + (s & 1)
        t, f = 4 + cc * 4 + m * 2 + nb, jj
    elif kap < 32:
        x = kap - 24
        t, f = 12 + (x >> 1), (x & 1) * 2 + nb
    else:
        x = kap - 32
        t, f = 16 + (x >> 1), (x & 1) * 2 + nb
    return tile_slot_areg(t) + 4 * f, t


def chop(items, n=7):
    gaps, cur = [], []
    items = list(items)
    for k, it in enumerate(items):
        cur += it if isinstance(it, list) else [it]
        nx = items[k + 1] if k + 1 < len(items) else None
        if nx is not None and not isinstance(nx, list) and nx.pseudo is None and nx.op.startswith(('s_cselect', 's_cbranch', 's_addc')):
            continue
        if len(cur) >= n:
            gaps.append(cur)
            cur = []
    if cur:
        gaps.append(cur)
    return gaps


def weave_gaps(gaps, sides):
    extra = [[] for _ in gaps]
    for stream, g0, g1 in sides:
        items = [it if isinstance(it, list) else [it] for it in stream]
        if not items:
            continue
        costs = [sum(cost(x) for x in it) for it in items]
        total = sum(costs)
        ng = g1 - g0 + 1
        acc = 0
        for it, c in zip(items, costs):
            g = g0 + min(ng - 1, int(acc * ng / total)) if total else g0
            extra[g].extend(it)
            acc += c
    return [g + e for g, e in zip(gaps, extra)]


def needtile(t):
    return I('', pseudo='needtile', arg=t)


def mark(name):
    return I('', pseudo='mark', arg=name)


class Sched:
    def __init__(self, gen, model, out):
        self.g, self.m, self.out = gen, model, out
        self.m0 = None
        self.q0, self.q1, self.q3 = [], [], []
        self.left = {}
        self.tiles = []
        self.cur = []
        self.pend = []
        self.slot_tok = {}
        self.slot_time = {}
        self.free = []
        self.slot_avail = []
        self.read_done = set()
        self.issued_tiles = set()
        self.gap = 0

    def add(self, q, vms):
        for v in vms:
            if v.op.tok is not None:
                self.left[v.op.tok] = self.left.get(v.op.tok, 0) + 1
            q.append(v)

    def emit(self, ins, vm=None):
        self.m.step(ins, vm)
        self.out.append(ins)

    def emit_vm(self, v):
        if v.m0 is not None and v.m0 != self.m0:
            self.emit(I(f's_add_u32 m0, {v.m0[0]}, {v.m0[1]}'))
            self.m0 = v.m0
        for p in v.pre:
            self.emit(p)
        self.emit(v.op, v)
        for p in getattr(v, 'post', []):
            self.emit(p)
        if v.op.tok in self.left:
            self.left[v.op.tok] -= 1

    def ok(self, v, force):
        if self.gap < v.earliest:
            return False
        if v.after_done is not None:
            if v.after_done not in self.m.done or self.left.get(v.after_done, 0) > 0:
                return False
            if not force and self.m.done[v.after_done] + self.g.c.rmargin > self.m.t:
                return False
        if v.needs is not None and not v.needs():
            return False
        return True

    def reads(self, n, force=False):
        k = 0
        while self.pend and k < n:
            t, r, slot, eg = self.pend[0]
            if self.gap < eg:
                break
            if r[0].pseudo == 'waitv':
                if not force and self.m.done[r[0].arg] + self.g.c.rmargin > self.m.t:
                    break
                self.emit(r.pop(0))
            self.emit(r.pop(0))
            k += 1
            if not r:
                self.pend.pop(0)
                self.read_done.add(t)
                self.free.append(slot)
                self.slot_time[slot] = self.m.t
        return k

    def try_tile(self, force):
        if self.cur:
            v = self.cur.pop(0)
            self.emit_vm(v)
            if not self.cur:
                self.pend.append(self.curp)
                self.issued_tiles.add(self.curp[0])
            return True
        if not self.tiles or not self.free:
            return False
        t, eg, er = self.tiles[0]
        if self.gap < eg:
            return False
        slot = self.free[0]
        if not force and self.slot_time.get(slot, -999) + 60 > self.m.t:
            return False
        self.tiles.pop(0)
        self.free.pop(0)
        d, r = self.g.b2_tile(t, slot)
        if slot in self.slot_tok:
            self.emit(waitl(self.slot_tok[slot]))
        self.slot_tok[slot] = f'b2_{t}r'
        self.cur = d
        self.curp = [t, r, slot, er]
        return self.try_tile(force)

    def one(self, force=False):
        if self.q0 and self.ok(self.q0[0], False):
            self.emit_vm(self.q0.pop(0))
            return True
        if self.cur:
            return self.try_tile(force)
        if self.q1 and self.ok(self.q1[0], force):
            self.emit_vm(self.q1.pop(0))
            return True
        if self.try_tile(False):
            return True
        if self.q3 and self.ok(self.q3[0], False):
            self.emit_vm(self.q3.pop(0))
            return True
        if force:
            if self.reads(99, False):
                return True
            if self.try_tile(True):
                return True
            if self.q3 and self.ok(self.q3[0], True):
                ad = self.q3[0].after_done
                if self.pend and self.gap >= self.pend[0][3] and self.pend[0][1][0].pseudo == 'waitv' and \
                        self.m.done[self.pend[0][1][0].arg] < self.m.done[ad]:
                    return self.reads(1, True) > 0
                self.emit_vm(self.q3.pop(0))
                return True
            if self.reads(1, True):
                return True
        return False

    def run(self, gaps):
        for gp in gaps:
            while self.slot_avail and self.slot_avail[0][0] <= self.gap:
                self.free.append(self.slot_avail.pop(0)[1])
            for ins in gp:
                if ins.pseudo == 'waitv':
                    toks = ins.arg if isinstance(ins.arg, (list, tuple)) else [ins.arg]
                    while any(self.left.get(t, 0) > 0 for t in toks):
                        assert self.one(True), f'cannot force {toks} at gap {self.gap}'
                if ins.pseudo == 'needtile':
                    while ins.arg not in self.read_done:
                        if ins.arg in self.issued_tiles:
                            assert self.reads(8, True), f'tile {ins.arg} reads blocked at gap {self.gap}'
                        else:
                            assert self.one(True), f'cannot force tile {ins.arg} at gap {self.gap}'
                    continue
                if ins.pseudo == 'ahead':
                    while any(self.left.get(t, 0) > 0 for t in ins.arg) and self.one(True):
                        pass
                    continue
                if ins.pseudo == 'mark':
                    if self.g.c.verbose:
                        print(f'  model {ins.arg:10s} t={self.m.t:6d} stall={self.m.stall:6d} tiles issued={len(self.issued_tiles)}')
                    continue
                self.emit(ins)
            self.reads(2)
            for _ in range(2):
                if self.m.can_issue_at(1) > self.m.t + 4 or not self.one():
                    break
            self.gap += 1


class Gen:
    def __init__(self, cfg):
        self.c = cfg
        self.slow = []
        self.nstamp = 0

    def stamp(self, name):
        s = S()
        s.append(mark(name))
        if not self.c.prof:
            return s
        k = self.nstamp
        self.nstamp += 1
        self.stamp_names.append(name)
        s(f's_memtime s[0:1]')
        s('s_waitcnt lgkmcnt(0)')
        if self.vprof is None:
            s(f'v_accvgpr_read_b32 {vX1}, a31')
            s(f'v_writelane_b32 {vX1}, s0, {k}')
            s(f'v_accvgpr_write_b32 a31, {vX1}')
            if name == 'p4 end':
                self.vprof = vW
                s(f'v_mov_b32 {vW}, {vX1}')
        else:
            s(f'v_writelane_b32 {self.vprof}, s0, {k}')
        return s

    def tile_vms(self, addr, srd, sc, m0, tok, earliest=0):
        out = []
        for j in range(4):
            off = f' offset:{j*1088}' if j else ''
            op = I(f'buffer_load_dwordx4 {vT}, {srd}, {sc[j]} offen{off} lds', tok=tok)
            out.append(VM(op, pre=addr if j == 0 else (), m0=m0, lat=self.c.lat, earliest=earliest))
        return out

    def x_tile(self, c):
        s = S()
        if c & 1:
            s(f's_add_u32 {sD}, {sGX[c>>1]}, 128')
            s(f'v_add_u32 {vT}, {sD}, {vPatX}')
        else:
            s(f'v_add_u32 {vT}, {sGX[c>>1]}, {vPatX}')
        return self.tile_vms(s, SRD_X, sCX, (sMX, (c & 3) * TILE), f'x{c}')

    def wssm_tile(self, g):
        s = S()
        s(f'v_add_u32 {vT}, {sGX[g]}, {vPatS}')
        return self.tile_vms(s, SRD_S, sCT, (sMS, g * 4 * TILE), f'ws{g}')

    def wf_pair(self, b, cls, g, region, earliest, cost, w):
        base = region + (128 if cls == 'E' else 0) + g * 8192
        tok = f'wf{b}{cls}{g}'
        a = VM(I(f'buffer_load_dwordx4 {vPatF}, {SRD_F}, {sD} offen lds', tok=tok),
               pre=[I(f's_add_u32 {sD}, {sGF[g]}, {sBC[(b, cls)]}')], m0=(sMF, base), cost=cost, w=w, lat=self.c.lat, earliest=earliest)
        b_ = VM(I(f'buffer_load_dwordx4 {vPatF}, {SRD_F}, {sD} offen offset:1024 lds', tok=tok),
                pre=[I(f's_add_u32 {sD}, {sD}, {32*2752 - 1024}')], m0=(sMF, base), cost=cost, w=w, lat=self.c.lat, earliest=earliest)
        return [a, b_]

    def b2_tile(self, t, slot):
        d = S()
        r = []
        ab = tile_slot_areg(t)
        tok = f'b2_{t}'
        r.append(waitv(tok))
        if 4 <= t < 12:
            x = t - 4
            cc, m, nb = x >> 2, (x >> 1) & 1, x & 1
            off = nb * 32768 + cc * 128
            if off:
                d(f'v_add_u32 {vT}, {off}, {vPatC}')
            else:
                d(f'v_mov_b32 {vT}, {vPatC}')
            d = self.tile_vms(d, SRD_CI if m else SRD_CR, sCT, (sMTR, slot * SLOT), tok)
            for jj in range(4):
                r.append(I(f'ds_read_b128 {q("a", ab+4*jj)}, {vRa[jj&1]} offset:{slot*SLOT + 64*(jj>>1)}', tok=tok + 'r'))
        else:
            i = t if t < 4 else t - 8
            d(f'v_add_u32 {vT}, {sWD[i]}, {vPatD}')
            d = self.tile_vms(d, SRD_D, sCT, (sMTR, slot * SLOT), tok)
            for ks in range(2):
                for nb in range(2):
                    for tt in range(2):
                        r.append(I(f'ds_read_b64_tr_b16 {q("a", ab+4*(ks*2+nb)+2*tt, 2)}, {vRd[nb]} offset:{slot*SLOT + (2*ks+tt)*1088}', tok=tok + 'r'))
        return d, r

    def flag_vm(self, tok, saddr, imm, earliest=0):
        v = VM(I(f'buffer_store_dword {vTAG}, off, {SRD_W}, {saddr} offset:{imm} sc1'),
               pre=[waitv(tok), I('s_mov_b64 exec, 1')], cost=20, w=0.3, lat=1100, after_done=tok, earliest=earliest)
        v.post = [I('s_mov_b64 exec, -1')]
        return v

    def cmul(self, s, dr, di, ar, ai, br, bi):
        s(f'v_mul_f32 {dr}, {ar}, {br}')
        s(f'v_mul_f32 {di}, {ar}, {bi}')
        s(f'v_fma_f32 {dr}, -{ai}, {bi}, {dr}')
        s(f'v_fmac_f32 {di}, {ai}, {br}')

    def pw(self, s, dr, di, n, zr, zi, t0, t1):
        s(f'v_mul_f32 {t0}, {n}, {zr}')
        s(f'v_mul_f32 {t1}, {n}, {zi}')
        s(f'v_exp_f32 {t0}, {t0}')
        s(f'v_rndne_f32 {dr}, {t1}')
        s(f'v_sub_f32 {t1}, {t1}, {dr}')
        s(f'v_cos_f32 {dr}, {t1}')
        s(f'v_sin_f32 {di}, {t1}')
        s(f'v_mul_f32 {dr}, {dr}, {t0}')
        s(f'v_mul_f32 {di}, {di}, {t0}')

    def bfr(self, s, d):
        s(f'v_cvt_pk_bf16_f32 {d}, {d}, {d}')
        s(f'v_lshlrev_b32 {d}, 16, {d}')


    def ffn_epi(self, a, sbase, imm_base, tok):
        G, U = ACC[a], ACC[a] + 16
        k1 = -2.0 * math.log2(math.e) * math.sqrt(2.0 / math.pi)
        s = S()
        tmp = [vX0, vX1]
        s(f's_add_u32 {sS}, {sbase}, {imm_base}')
        for half in range(2):
            for p in range(4):
                e = [half * 8 + 2 * p, half * 8 + 2 * p + 1]
                for k in range(2):
                    s(f'v_mul_f32 {tmp[k]}, v{G+e[k]}, v{G+e[k]}')
                for k in range(2):
                    s(f'v_mul_f32 v{U+e[k]}, v{G+e[k]}, v{U+e[k]}')
                for k in range(2):
                    s(f'v_fmaak_f32 {tmp[k]}, {tmp[k]}, {vK2}, {hx(k1)}')
                for k in range(2):
                    s(f'v_mul_f32 v{G+e[k]}, v{G+e[k]}, {tmp[k]}')
                for k in range(2):
                    s(f'v_exp_f32 v{G+e[k]}, v{G+e[k]}')
                for k in range(2):
                    s(f'v_add_f32 v{G+e[k]}, 1.0, v{G+e[k]}')
                for k in range(2):
                    s(f'v_rcp_f32 v{G+e[k]}, v{G+e[k]}')
                for k in range(2):
                    s(f'v_mul_f32 v{U+e[k]}, v{U+e[k]}, v{G+e[k]}')
                s(f'v_cvt_pk_bf16_f32 v{G+half*8+p}, v{U+e[0]}, v{U+e[1]}')
            s(f'buffer_store_dwordx4 {q("v", G+8*half)}, {vStH}, {SRD_W}, {sS} offen offset:{2048*half} sc1', tok=tok if half else None)
        return list(s)

    def e_loads(self):
        s = S()
        t = f'v{EB+2}'
        s(f'v_lshrrev_b32 {t}, 9, {vL16}')
        s(f'v_lshl_add_u32 {t}, {sWV}, 1, {t}')
        s(f'v_lshlrev_b32 {t}, 1, {t}')
        s(f'v_and_b32 v{EB}, 0x1f0, {vL16}')
        s(f'v_lshl_add_u32 v{EB}, {t}, 9, v{EB}')
        s(f'v_add_u32 v{EB+4}, 512, v{EB}')
        s(f'v_mov_b32 v{EB+1}, {OOB}')
        s(f'v_cmp_gt_u32 s[20:21], {sTB}, {t}')
        s(f'v_add_u32 {t}, 1, {t}')
        s(f'v_cmp_gt_u32 s[18:19], {sTB}, {t}')
        s(f's_lshl_b32 {sT}, {sCG}, 13')
        s(f's_add_u32 {sT}, {sT}, {EG}')
        s(f'v_cndmask_b32 v{EB}, v{EB+1}, v{EB}, s[20:21]')
        s(f'v_cndmask_b32 v{EB+4}, v{EB+1}, v{EB+4}, s[18:19]')
        s(f'buffer_load_dwordx4 {q("v", EB)}, v{EB}, {SRD_W}, {sT} offen sc1')
        s(f'buffer_load_dwordx4 {q("v", EB+4)}, v{EB+4}, {SRD_W}, {sT} offen sc1', tok='eld')
        return s

    def e_check(self):
        s = S()
        s(f'v_xor_b32 v{EB+2}, {sTAG}, v{EB+2}')
        s(f'v_xor_b32 v{EB+3}, {sTAG}, v{EB+3}')
        s(f'v_xor_b32 v{EB+6}, {sTAG}, v{EB+6}')
        s(f'v_xor_b32 v{EB+7}, {sTAG}, v{EB+7}')
        s(f'v_or_b32 v{EB+2}, v{EB+2}, v{EB+3}')
        s(f'v_or_b32 v{EB+6}, v{EB+6}, v{EB+7}')
        s(f'v_cmp_ne_u32 s[0:1], 0, v{EB+2}')
        s(f'v_cmp_ne_u32 vcc, 0, v{EB+6}')
        s(f's_and_b64 s[0:1], s[0:1], s[20:21]')
        s(f's_and_b64 vcc, vcc, s[18:19]')
        s(f's_or_b64 s[0:1], s[0:1], vcc')
        return s

    def finalize(self, prog):
        prog = [i for i in prog if i.pseudo not in ('mark', 'needtile', 'ahead')]
        return render(insert_nops(insert_waits(prog)))

    def add_slow(self, name, load, check):
        p = [label(f'{name}_slow')]
        p += list(S()('s_nop 7'))
        p += list(load)
        p += list(S()(f's_waitcnt vmcnt(0)\ns_add_u32 {sSPIN}, {sSPIN}, 1\ns_cmp_gt_u32 {sSPIN}, {self.c.spin}\ns_cbranch_scc1 {name}_back'))
        p += list(check)
        p += list(S()(f's_cbranch_scc1 {name}_slow\ns_nop 3\ns_branch {name}_back'))
        self.slow.append(self.finalize(p))

    def fl_load(self, reg):
        s = S()
        s(f'v_lshrrev_b32 {reg}, 2, {vL16}')
        s(f'v_and_b32 {reg}, 0x7c, {reg}')
        s(f'buffer_load_dword {reg}, {reg}, {SRD_W}, {sFLC} offen sc1')
        return s

    def fl_check(self, reg, st):
        s = S()
        m = sM3 if st == 3 else hex(0xff << (8 * st))
        s(f'v_cmp_ne_u32 s[0:1], {sTAG}, {reg}')
        s(f's_and_b32 s0, s0, {m}')
        return s

    def fl_gate(self, reg, st):
        name = f'Lfl{st}'
        self.add_slow(name, self.fl_load(reg), self.fl_check(reg, st))
        g = list(self.fl_check(reg, st)) + list(S()(f's_cbranch_scc1 {name}_slow')) + [label(f'{name}_back')]
        return g
    def build(self):
        c = self.c
        self.stamp_names = []
        self.vprof = None
        P = S()
        NRING = 7 if c.prof else 8
        P(f'''
s_cmp_ge_u32 s2, 256
s_cbranch_scc1 Lend''')
        if c.prof:
            P('s_memtime s[94:95]\ns_memrealtime s[96:97]')
        P(f'''
s_load_dwordx16 s[16:31], s[0:1], 0
s_load_dwordx16 s[32:47], s[0:1], 64''')
        P(f'''
v_lshrrev_b32 v64, 6, v0
v_and_b32 v65, 63, v0
v_readfirstlane_b32 {sWV}, v64
s_and_b32 {sT}, s2, 7
s_lshr_b32 {sT2}, s2, 3''')
        if c.codepf:
            P('s_getpc_b64 s[0:1]')
            P.append(label('Lpc'))
            P(f'''
s_lshl_b32 {sT3}, {sT2}, 2
s_add_u32 {sT3}, {sT3}, {sWV}
s_lshl_b32 {sT3}, {sT3}, 8
v_lshl_add_u32 v66, v65, 7, {sT3}
v_min_u32 v66, Lcode_end-Lpc-4, v66
s_mov_b64 exec, 3
global_load_dword v125, v66, s[0:1]
s_mov_b64 exec, -1''')
        P(f'''
s_lshr_b32 {sTB}, {sT}, 1
s_lshl_b32 {sTB}, {sTB}, 2
s_and_b32 {sT3}, {sT2}, 3
s_add_u32 {sTB}, {sTB}, {sT3}
s_and_b32 {sT}, {sT}, 1
s_lshr_b32 {sNT}, {sT2}, 2
s_lshl_b32 {sCG}, {sT}, 3
s_add_u32 {sCG}, {sCG}, {sNT}
s_lshl_b32 {sMT}, {sTB}, 1
s_add_u32 {sMT}, {sMT}, {sT}
v_lshrrev_b32 v66, 3, v65
v_and_b32 v67, 7, v65
v_bfe_u32 v68, v65, 4, 2
v_xor_b32 v68, v67, v68
v_lshlrev_b32 v68, 4, v68
v_lshrrev_b32 v69, 2, v66
v_and_b32 v70, 3, v66
v_lshl_add_u32 v69, v69, 4, v70
v_lshl_add_u32 {vPatX}, v69, 10, v68
s_lshl_b32 {sT3}, {sTB}, 2
s_add_u32 {sT3}, {sT3}, {sWV}
s_lshl_b32 {sT4}, {sT3}, 15
v_add_u32 {vPatX}, {sT4}, {vPatX}
s_mul_i32 {sT4}, {sWV}, {4*TILE}
s_mov_b32 s80, 3008
s_mov_b32 s81, 6016
s_mov_b32 s82, 9024''')
        for g in range(4):
            P(f's_add_u32 {sT2}, {sCG}, {g}\ns_and_b32 {sT2}, {sT2}, 3\ns_lshl_b32 {sGX[g]}, {sT2}, 8')
        P(f'''
v_and_b32 v71, 31, v65
s_lshl_b32 {sT2}, {sCG}, 5
v_add_lshl_u32 v72, v71, {sT2}, 1
v_mov_b32 v73, 0
s_waitcnt lgkmcnt(0)
s_mov_b32 s48, s16
s_mov_b32 s49, s17
s_mov_b32 s50, {2048*1024}
s_mov_b32 s51, 0x20000
global_load_ushort v80, v72, s[18:19]
global_load_ushort v81, v72, s[20:21]
global_load_ushort v82, v72, s[30:31]
global_load_dword v83, v73, s[46:47] sc1''')
        P(f'''
s_cmp_ge_u32 {sWV}, 2
s_cselect_b32 s52, s24, s22
s_cselect_b32 s53, s25, s23
s_cselect_b32 s56, s38, s36
s_cselect_b32 s57, s39, s37
s_mov_b32 s60, s26
s_mov_b32 s61, s27
s_mov_b32 s64, s28
s_mov_b32 s65, s29
s_mov_b32 {sMX}, {sT4}''')

        M = Model()
        M.alpha = c.alpha / 100
        M.slat = c.slat
        SC = Sched(self, M, P)
        self.code_bytes = 25600
        pfplan = dict(x.split('@') for x in c.pf.split(',') if x)

        def pf_vm(kind):
            s = S()
            lanes, srd, dst = {'S': (8, SRD_S, 120), 'F': (22, SRD_F, 121), 'C': (4, SRD_CR, 122), 'I': (4, SRD_CI, 123), 'D': (11, SRD_D, 124)}[kind]
            if kind == 'S':
                s(f's_lshr_b32 {sS}, s2, 1\ns_lshl_b32 {sS}, {sS}, 1\ns_and_b32 s0, {sWV}, 1\ns_add_u32 {sS}, {sS}, s0')
                s(f's_and_b32 s0, s2, 1\ns_lshl_b32 s0, s0, 8\ns_add_u32 {sS}, {sS}, s0')
            elif kind == 'F':
                s(f's_lshl_b32 {sS}, s2, 1\ns_and_b32 s0, {sWV}, 1\ns_add_u32 {sS}, {sS}, s0')
            else:
                s(f's_lshl_b32 {sS}, s2, 2\ns_add_u32 {sS}, {sS}, {sWV}')
            s(f's_mul_i32 {sS}, {sS}, {lanes*128}')
            s(f's_mov_b64 exec, {hex((1 << lanes) - 1)}')
            v = VM(I(f'buffer_load_dword v{dst}, v119, {srd}, {sS} offen'), pre=list(s), cost=lanes * 9, w=lanes / 8, lat=c.lat)
            v.post = [I('s_mov_b64 exec, -1')]
            return v
        seq = []
        for cc in range(8):
            seq += self.x_tile(cc)
        for g in range(4):
            seq += self.wssm_tile(g)
        for v in seq:
            SC.left[v.op.tok] = SC.left.get(v.op.tok, 0) + 1
        self.seqpos = 0

        def nxt(n=1):
            for _ in range(n):
                for k, p in pfplan.items():
                    if p == str(self.seqpos):
                        SC.emit_vm(pf_vm(k))
                SC.emit_vm(seq[self.seqpos])
                self.seqpos += 1
        P(f"""
v_lshlrev_b32 v119, 7, v65
s_mov_b32 s54, {512*1024}
s_mov_b32 s55, 0x20000
s_mov_b32 s58, {512*2752}
s_mov_b32 s59, 0x20000""")
        nxt(2)
        if c.prof:
            P(f'v_mov_b32 {vX1}, 0\nv_writelane_b32 {vX1}, s94, 60\nv_writelane_b32 {vX1}, s96, 61\nv_accvgpr_write_b32 a31, {vX1}')
        U = S()
        U(f'''
s_mov_b32 s62, {512*1024}
s_mov_b32 s63, 0x20000
s_mov_b32 s66, {512*1024}
s_mov_b32 s67, 0x20000
s_mov_b32 s68, s40
s_mov_b32 s69, s41
s_mov_b32 s70, {1376*1024}
s_mov_b32 s71, 0x20000
s_mov_b32 s72, s46
s_mov_b32 s73, s47
s_mov_b32 s74, {hex(PROF + 0x100000) if c.prof else WS_BYTES}
s_mov_b32 s75, 0x20000
s_mov_b32 s76, s42
s_mov_b32 s77, s43
s_mov_b32 s78, {2048*2048}
s_mov_b32 s79, 0x20000
s_mov_b32 s83, 7104
s_mov_b32 s84, 14208
s_mov_b32 s85, 21312
s_mov_b32 {sMASK}, 0xffff0000
s_mov_b32 {sONE}, 0x3f803f80
s_mov_b32 {sSPIN}, 0''')
        U(f'''
s_mul_i32 {sB0}, {sCG}, 3
s_lshl_b32 {sT}, {sCG}, 1
s_add_u32 {sT}, {sT}, 11
s_min_u32 {sB0}, {sB0}, {sT}
s_and_b32 {sT}, {sB0}, 1
s_mul_i32 {sT2}, {sT}, 2752
s_xor_b32 {sT}, {sT}, 1
s_mul_i32 {sT}, {sT}, 2752
s_lshl_b32 {sT4}, {sB0}, 6
s_add_u32 {sBC[(0,'E')]}, {sT4}, {sT2}
s_add_u32 {sBC[(0,'O')]}, {sT4}, {sT}
s_add_u32 {sBC[(1,'E')]}, {sBC[(0,'E')]}, 64
s_add_u32 {sBC[(1,'O')]}, {sBC[(0,'O')]}, 64
s_cmp_lt_u32 {sCG}, 11
s_cselect_b32 {sT}, 0, {OOB}
s_add_u32 {sT}, {sT}, 128
s_add_u32 {sBC[(2,'E')]}, {sBC[(0,'E')]}, {sT}
s_add_u32 {sBC[(2,'O')]}, {sBC[(0,'O')]}, {sT}
s_and_b32 {sT}, {sWV}, 1
s_mul_i32 {sT}, {sT}, {64*2752}''')
        for g in range(4):
            U(f's_mul_i32 {sGF[g]}, {sGX[g]}, 1376\ns_add_u32 {sGF[g]}, {sGF[g]}, {sT}')
        U(f'''
s_lshl_b32 {sMF}, {sWV}, 11
s_mul_i32 {sMS}, {sWV}, {TILE}
s_add_u32 {sMTR}, {sMS}, {TRANS0}
s_add_u32 {sMS}, {sMS}, {WSSM}''')
        for i in range(4):
            U(f'''
s_lshl_b32 {sT}, {sWV}, 2
s_add_u32 {sT}, {sT}, {i}
s_mul_i32 {sT2}, {sT}, 3
s_lshl_b32 {sT}, {sT}, 1
s_add_u32 {sT}, {sT}, 11
s_min_u32 {sT}, {sT}, {sT2}
s_lshl_b32 {sWD[i]}, {sT}, 15
s_add_u32 {sWD[4+i]}, {sWD[i]}, 32768''')
        U(f'''
s_mul_i32 {sT}, {sWV}, {9*32768}
s_add_u32 {sWD[8]}, {sT}, {2*32768}
s_add_u32 {sWD[9]}, {sT}, {5*32768}
s_add_u32 {sWD[10]}, {sT}, {8*32768}
s_cmp_eq_u32 {sWV}, 3
s_cselect_b32 {sWD[10]}, {OOB}, {sWD[10]}
s_cselect_b32 {sM3}, 0x33, 0x77
s_lshl_b32 {sM3}, {sM3}, 24''')
        U(f'''
s_lshr_b32 {sT}, {sT3}, 1
s_and_b32 {sT2}, {sT3}, 1
s_mul_i32 {sSTB}, {sT}, {MT_STRIDE}
s_lshl_b32 {sT4}, {sT2}, 10
s_add_u32 {sSTB}, {sSTB}, {sT4}
s_lshl_b32 {sT4}, {sCG}, 12
s_add_u32 {sSTB}, {sSTB}, {sT4}
s_add_u32 {sSTB}, {sSTB}, {A2}
s_lshl_b32 {sT}, {sT}, 9
s_lshl_b32 {sT2}, {sT2}, 4
s_add_u32 {sT}, {sT}, {sT2}
s_add_u32 {sT}, {sT}, {FL}
s_lshr_b32 {sT2}, {sCG}, 2
s_lshl_b32 {sT2}, {sT2}, 7
s_and_b32 {sT4}, {sCG}, 3
s_lshl_b32 {sT4}, {sT4}, 2
s_add_u32 {sFLA}, {sT}, {sT2}
s_add_u32 {sFLA}, {sFLA}, {sT4}
s_mul_i32 {sT2}, {sCG}, 43
s_lshr_b32 {sT2}, {sT2}, 7
s_mul_i32 {sT4}, {sT2}, 3
s_sub_u32 {sT4}, {sCG}, {sT4}
s_lshl_b32 {sT2}, {sT2}, 7
s_lshl_b32 {sT4}, {sT4}, 2
s_add_u32 {sFL4}, {sT}, {sT2}
s_add_u32 {sFL4}, {sFL4}, {sT4}
s_cmp_lt_u32 {sCG}, 11
s_cselect_b32 {sFL4}, {sFL4}, {OOB}
s_cselect_b32 {sST4}, {sSTB}, {OOB}
s_lshl_b32 {sT}, {sMT}, 2
s_add_u32 {sT}, {sT}, {sWV}
s_lshl_b32 {sFLC}, {sT}, 7
s_add_u32 {sFLC}, {sFLC}, {FL}
s_mul_i32 {sA2B}, {sMT}, {MT_STRIDE}
s_add_u32 {sA2B}, {sA2B}, {A2}''')
        U(f'''
v_lshlrev_b32 {vL16}, 4, v65
v_lshl_add_u32 v69, v66, 10, v68
s_lshl_b32 {sT}, {sCG}, 15
s_and_b32 {sT2}, {sWV}, 1
s_lshl_b32 {sT2}, {sT2}, 7
s_add_u32 {sT}, {sT}, {sT2}
v_add_u32 {vPatS}, {sT}, v69
s_lshl_b32 {sT}, {sNT}, 16
s_lshl_b32 {sT2}, {sWV}, 8
s_add_u32 {sT}, {sT}, {sT2}
v_add_u32 {vPatC}, {sT}, v69
v_bfe_u32 v69, v65, 4, 1
v_lshlrev_b32 v69, 2, v69
v_xor_b32 v69, v67, v69
v_lshlrev_b32 v69, 4, v69
v_lshl_add_u32 v69, v66, 10, v69
s_lshl_b32 {sT}, {sNT}, 7
v_add_u32 {vPatD}, {sT}, v69
v_lshrrev_b32 v69, 2, v65
v_mul_u32_u24 v69, 5504, v69
v_and_b32 v70, 3, v65
v_lshl_add_u32 {vPatF}, v70, 4, v69''')
        U(f'''
v_lshrrev_b32 v74, 5, v65
v_lshrrev_b32 v69, 3, v71
v_mul_u32_u24 v69, 1088, v69
v_lshl_add_u32 v69, v67, 7, v69
v_bfe_u32 v75, v65, 1, 2
v_xor_b32 v75, v75, v74
v_lshl_add_u32 v69, v75, 4, v69
v_add_u32 {vRa[0]}, {sMX}, v69
v_xor_b32 {vRa[1]}, 32, {vRa[0]}
v_add_u32 {vRs[0]}, {WSSM}, v69
v_xor_b32 {vRs[1]}, 32, {vRs[0]}''')
        U(f'''
v_bfe_u32 v75, v65, 4, 1
v_lshlrev_b32 v75, 5, v75
v_lshl_add_u32 v75, v70, 3, v75
v_bfe_u32 v76, v65, 2, 2
v_lshl_add_u32 v77, v74, 2, v76
v_lshl_add_u32 v78, v77, 7, v75
v_bfe_u32 v79, v65, 3, 1
v_lshl_add_u32 v78, v79, 6, v78
v_add_u32 {vRd[0]}, {sMTR}, v78
v_xor_b32 {vRd[1]}, 64, {vRd[0]}
v_lshl_add_u32 v78, v74, 2, v79
v_lshl_add_u32 v78, v78, 6, v75
v_add_u32 v77, {sB0}, v76
v_and_b32 v77, 1, v77
v_cmp_eq_u32 {sISE}, 0, v77
v_mov_b32 v77, {R2}
v_mov_b32 v79, {R0 + 128}
v_cndmask_b32 v77, v77, v79, {sISE}
v_add_u32 {vW}, v77, v78''')
        U(f'''
v_bfe_u32 v77, v65, 2, 1
v_lshrrev_b32 v78, 3, v71
v_lshlrev_b32 v78, 2, v78
v_lshl_add_u32 v78, v77, 4, v78
v_add_u32 v78, v78, v70
v_lshl_add_u32 v77, v74, 5, v78
v_lshlrev_b32 {vStH}, 4, v77
s_lshl_b32 {sT}, {sWV}, 5
v_add_lshl_u32 v109, v78, {sT}, 3
v_add_u32 v109, {ST}, v109
v_lshl_add_u32 {vSig}, {sWV}, 1, v74
v_lshlrev_b32 {vExR}, 4, v71
v_add_u32 {vExR}, {EX}, {vExR}
v_lshl_add_u32 {vExW}, v74, 3, {vExR}
s_lshl_b32 {sT}, {sWV}, 9
v_add_u32 {vExW}, {sT}, {vExW}
v_mov_b32 {vK2}, {hx(-2.0 * math.log2(math.e) * math.sqrt(2.0 / math.pi) * 0.044715)}''')

        for k, gp in enumerate(chop(U, c.chop0)):
            P += gp
            if self.seqpos < c.nearly:
                nxt()
        P += self.stamp('setup')
        L2E = hx(math.log2(math.e))
        P(f'''
v_lshlrev_b32 v80, 16, v80
v_lshlrev_b32 v81, 16, v81
v_lshlrev_b32 v82, 16, v82
v_readfirstlane_b32 {sTAG}, v83
v_mul_f32 v82, {L2E}, v82
v_exp_f32 v82, v82
s_add_u32 {sTAG}, {sTAG}, 0x9e3779b9''')
        self.bfr(P, 'v82')
        P(f'''
v_mul_f32 v84, v82, v80
v_mul_f32 v85, v82, v81
v_mul_f32 v84, {L2E}, v84
v_mul_f32 v85, 0.15915494, v85''')
        self.pw(P, vLr, vLi, '1.0', 'v84', 'v85', 'v86', 'v87')
        self.pw(P, vL16r, vL16i, hx(16.0), 'v84', 'v85', 'v86', 'v87')
        P(f'''
v_mul_f32 v86, v80, v80
v_fmac_f32 v86, v81, v81
v_rcp_f32 v86, v86
v_add_f32 v87, -1.0, {vLr}
v_mul_f32 {vCr}, v87, v80
v_fmac_f32 {vCr}, {vLi}, v81
v_mul_f32 {vCi}, {vLi}, v80
v_fma_f32 {vCi}, -v87, v81, {vCi}
v_add_f32 v86, v86, v86
v_mul_f32 {vCr}, {vCr}, v86
v_mul_f32 {vCi}, {vCi}, v86
v_lshlrev_b32 v88, 4, {vSig}
v_cvt_f32_u32 v88, v88''')
        self.pw(P, 'v89', 'v90', 'v88', 'v84', 'v85', 'v86', 'v87')
        self.cmul(P, vMr, vMi, 'v89', 'v90', vCr, vCi)
        P(f'''
v_lshlrev_b32 v88, 1, {vSig}
v_sub_u32 v88, {sTB}, v88
v_add_u32 v89, -1, v88
v_add_u32 v90, -2, v88
v_max_i32 v89, 0, v89
v_max_i32 v90, 0, v90
v_lshlrev_b32 v89, 7, v89
v_lshlrev_b32 v90, 7, v90
v_cvt_f32_u32 v89, v89
v_cvt_f32_u32 v90, v90''')
        self.pw(P, vW0r, vW0i, 'v89', 'v84', 'v85', 'v86', 'v87')
        self.pw(P, vW1r, vW1i, 'v90', 'v84', 'v85', 'v86', 'v87')

        for k in range(4):
            P(f'v_mov_b32 v{64+k}, 0')
        P += self.stamp('params')
        nxt(16 - self.seqpos)

        def xstats(cc):
            s = S()
            for r in range(16):
                a = AB + cc * 16 + r
                s(f'v_dot2c_f32_bf16 v{64 + (r & 1)}, {sONE}, v{a}')
                s(f'v_dot2c_f32_bf16 v{66 + (r & 1)}, v{a}, v{a}')
            return s
        for cc in range(9):
            if cc < 8:
                P.append(waitv(f'x{cc}'))
                for jj in range(4):
                    P(f'ds_read_b128 {q("v", AB + cc*16 + 4*jj)}, {vRa[jj&1]} offset:{(cc&3)*TILE + 64*(jj>>1)}', tok=f'xr{cc}')
            if cc > 0:
                P.append(waitl(f'xr{cc-1}'))
                st_ = xstats(cc - 1)
                for k in range(4):
                    if cc < 8 or k < 2:
                        nxt()
                    P += st_[8 * k:8 * k + 8]
            if cc == 0:
                P += self.stamp('x0 landed')
        P += self.stamp('x done')
        Z = S()
        Z(f'''
v_add_f32 v64, v64, v65
v_add_f32 v66, v66, v67
v_mov_b32 v65, v64
v_mov_b32 v67, v66
v_permlane32_swap_b32 v64, v65
v_permlane32_swap_b32 v66, v67
v_add_f32 v64, v64, v65
v_add_f32 v66, v66, v67
v_mul_f32 v64, {hx(1/512)}, v64
v_mul_f32 v66, {hx(1/512)}, v66
v_fma_f32 v66, -v64, v64, v66
v_max_f32 v66, 0, v66''')
        self.bfr(Z, 'v64')
        self.bfr(Z, 'v66')
        Z(f'v_add_f32 v66, {hx(1e-5)}, v66')
        self.bfr(Z, 'v66')
        Z('v_sqrt_f32 v66, v66')
        self.bfr(Z, 'v66')
        Z(f'''
v_rcp_f32 {vNr}, v66
v_mul_f32 {vNc}, -v64, {vNr}'''.replace(f'v_mul_f32 {vNc}', f'v_mul_f32_e64 {vNc}'))
        Z(f'''
v_mov_b32 v68, {vNr}
v_mov_b32 v69, {vNc}
ds_write_b64 v109, v[68:69]''')
        Z(f'''
s_sub_u32 {sT}, {sMTR}, {sMX}
v_add_u32 {vRa[0]}, {sT}, {vRa[0]}
v_xor_b32 {vRa[1]}, 32, {vRa[0]}''')


        zz = chop(Z, 14)
        for k, gp in enumerate(zz):
            P += gp
            if self.seqpos < 48:
                nxt()
        assert self.seqpos == 48
        M.t = 0
        M.clast = 800
        M.next_ok = 100
        M.stall = 0
        for g in range(4):
            M.done[f'ws{g}'] = max(0, 800 - 320 * (3 - g))

        def norm(s_):
            s = S()
            for d in range(0, 4, 2):
                a0, a1 = AB + 4 * s_ + d, AB + 4 * s_ + d + 1
                s(f'''
v_lshlrev_b32 v70, 16, v{a0}
v_and_b32 v71, {sMASK}, v{a0}
v_lshlrev_b32 v72, 16, v{a1}
v_and_b32 v73, {sMASK}, v{a1}
v_fma_f32 v70, v70, {vNr}, {vNc}
v_fma_f32 v71, v71, {vNr}, {vNc}
v_fma_f32 v72, v72, {vNr}, {vNc}
v_fma_f32 v73, v73, {vNr}, {vNc}
v_cvt_pk_bf16_f32 v{a0}, v70, v71
v_cvt_pk_bf16_f32 v{a1}, v72, v73''')
            return s

        need = {
            (0, g): [f'ws{g}'] for g in range(4)}
        for g in range(4):
            need[(1, g)] = [f'wf0E{g}', f'wf0O{g}']
            need[(2, g)] = [f'wf1E{g}', f'wf1O{g}']
            need[(3, g)] = [f'wf2E{g}', f'wf2O{g}']
        self.pre_bar = {}

        def wread(f):
            p, x = f >> 6, f & 63
            s_, m = x >> 1, x & 1
            g = s_ >> 3
            out = []
            if x % 16 == 0:
                if p >= 2 and g == 0:
                    t = S()
                    de, do = ((R1 - R0, 0) if p == 2 else (0, R0 - R2))
                    t(f's_mov_b64 exec, {sISE}' if de else f's_not_b64 exec, {sISE}')
                    t(f'v_add_u32 {vW}, {de if de else do}, {vW}')
                    t('s_mov_b64 exec, -1')
                    out += list(t)
                out += self.pre_bar.get((p, g), [])
                out.append(waitv(need[(p, g)]))
                out.append(I('s_barrier'))
            ring = 4 * (f % NRING)
            if p == 0:
                cc, jj = (s_ >> 2) & 1, s_ & 3
                out.append(I(f'ds_read_b128 {q("a", ring)}, {vRs[jj&1]} offset:{(4*g + 2*m + cc)*TILE + 64*(jj>>1)}', tok=f'w{f}'))
            else:
                blk = (s_ >> 1) & 3
                for t in range(2):
                    out.append(I(f'ds_read_b64_tr_b16 {q("a", ring + 2*t, 2)}, {vW} offset:{g*8192 + m*4096 + blk*1024 + (s_&1)*512 + t*128}', tok=f'w{f}'))
            return out

        def wmfma(f):
            p, x = f >> 6, f & 63
            s_, m = x >> 1, x & 1
            ring = 4 * (f % NRING)
            if p == 0:
                d = SR + 16 * m
                a, b = q('v', AB + 4 * s_), q('a', ring)
            else:
                d = ACC[(p - 1) & 1] + 16 * m
                a, b = q('a', ring), q('v', AB + 4 * s_)
            cin = '0' if s_ == 0 else q('v', d, 16)
            return I(f'v_mfma_f32_32x32x16_bf16 {q("v", d, 16)}, {a}, {b}, {cin}')

        LA = c.la_w

        def pass_gaps(p, lastread):
            gaps = []
            for x in range(64):
                f = 64 * p + x
                gp = []
                if x % 2 == 0:
                    gp.append(waitl(f'w{f+1}'))
                gp.append(wmfma(f))
                if f + LA < lastread:
                    gp += wread(f + LA)
                gaps.append(gp)
            return gaps
        aft = lambda g: max(0, 16 * g - LA + 1)


        GAPS = []
        pre = list(norm(0)) + list(norm(1))[:4]
        for f in range(LA):
            pre += wread(f)
        pre += self.stamp('p1 start')
        GAPS.append(pre)
        G1 = len(GAPS)
        gaps = pass_gaps(0, 64)
        nall = []
        for s_ in range(1, 32):
            nall += list(norm(s_))
        nall = nall[4:]
        for k in range(62):
            gaps[k] += nall[10 * k:10 * k + 10]
        GAPS += gaps
        for k, p in pfplan.items():
            if p[0] == 'g':
                v = pf_vm(k)
                v.earliest = G1 + int(p[1:])
                SC.q0.append(v)
        SC.q0.sort(key=lambda v: v.earliest)
        for g in range(4):
            SC.add(SC.q1, self.wf_pair(0, 'E', g, R0, G1 + 2, 100, 1.5) + self.wf_pair(1, 'E', g, R1, G1 + 2, 40, 0.5))
        for g in range(4):
            SC.add(SC.q1, self.wf_pair(0, 'O', g, R2, G1 + aft(2) + 2, 136, 2))
        Y = S()
        Y += self.stamp('p1 end')
        Y(f'v_mov_b32 v64, v{SR}\nv_mov_b32 v65, v{SI}')
        for t in range(1, 16):
            a, b = (64, 66) if t & 1 else (66, 64)
            Y(f"""
v_fma_f32 v{b}, -{vLi}, v{a+1}, v{SR+t}
v_fma_f32 v{b+1}, {vLi}, v{a}, v{SI+t}
v_fmac_f32 v{b}, {vLr}, v{a}
v_fmac_f32 v{b+1}, {vLr}, v{a+1}""")
        Y(f'ds_write_b64 {vExW}, v[66:67]', tok='exw')
        GAPS += chop(Y, 12)
        self.pre_bar[(1, 0)] = [waitl('exw')]
        pre = S()
        for f in range(64, 64 + LA):
            pre += wread(f)
            if f == 64:
                for k in range(4):
                    pre(f'ds_read_b128 {q("v", 112 + 4*k)}, {vExR} offset:{512*k}')
        pre += self.stamp('p2 start')
        GAPS.append(list(pre))

        G2 = len(GAPS)
        G3, G4 = G2 + 64, G2 + 128
        H = S()
        H(f'v_mov_b32 v{EB+4}, 0\nv_mov_b32 v{EB+5}, 0')
        for sg in range(1, 8):
            pr, pi = 112 + 2 * (sg - 1), 113 + 2 * (sg - 1)
            er, ei = 112 + 2 * sg, 113 + 2 * sg
            H(f'''
v_cmp_eq_u32 vcc, {sg}, {vSig}
v_fma_f32 v{er}, -{vL16i}, v{pi}, v{er}
v_fmac_f32 v{ei}, {vL16i}, v{pr}
v_cndmask_b32 v{EB+4}, v{EB+4}, v{pr}, vcc
v_cndmask_b32 v{EB+5}, v{EB+5}, v{pi}, vcc
v_fmac_f32 v{er}, {vL16r}, v{pr}
v_fmac_f32 v{ei}, {vL16r}, v{pi}''')
        H = list(H)
        pub = S()
        pub(f'''
v_mov_b32 v{EB}, v126
v_mov_b32 v{EB+1}, v127
v_mov_b32 v{EB+2}, {sTAG}
v_mov_b32 v{EB+3}, {sTAG}
s_lshl_b32 {sT}, {sCG}, 4
s_add_u32 {sT}, {sT}, {sTB}
s_lshl_b32 {sT}, {sT}, 9
s_add_u32 {sT}, {sT}, {EG}
s_cmp_eq_u32 {sWV}, 0
s_cselect_b32 {sT}, {sT}, {OOB}
s_mov_b32 exec_hi, 0
buffer_store_dwordx4 {q("v", EB)}, {vL16}, {SRD_W}, {sT} offen sc1
s_mov_b32 exec_hi, -1''')
        H.append(list(pub))
        K = S()
        self.cmul(K, vPr, vPi, f'v{EB+4}', f'v{EB+5}', vCr, vCi)
        for t in range(16):
            K(f'''
v_mul_f32 v110, v{SI+t}, {vCi}
v_mul_f32 v111, v{SR+t}, {vCi}
v_fma_f32 v{SR+t}, v{SR+t}, {vCr}, -v110
v_fma_f32 v{SI+t}, v{SI+t}, {vCr}, v111''')

        gaps = weave_gaps(pass_gaps(1, 256), [(H, 0, 15), (list(K), 16, 58)])
        gaps[63] += self.stamp('p3 start')
        GAPS += gaps
        for g in range(4):
            e = G2 + aft(g + 1) + 2
            SC.add(SC.q1, self.wf_pair(1, 'O', g, R2, e, 100, 1.5) + self.wf_pair(2, 'O', g, R0, e, 40, 0.5))
        for g in range(4):
            SC.add(SC.q1, self.wf_pair(2, 'E', g, R1, G3 + aft(g + 1) + 2, 136, 2))

        epi = self.ffn_epi(0, sSTB, 0, 'st0')
        self.add_slow('Le', self.e_loads(), self.e_check())
        el = [list(self.e_loads())]
        ec = list(self.e_check()) + list(S()('s_cbranch_scc1 Le_slow')) + [label('Le_back')]
        cp = S()
        self.cmul(cp, f'v{EB+2}', f'v{EB+3}', f'v{EB}', f'v{EB+1}', vW0r, vW0i)
        cp(f'''
v_fmac_f32 v{EB+2}, v{EB+4}, {vW1r}
v_fmac_f32 v{EB+3}, v{EB+4}, {vW1i}
v_fma_f32 v{EB+2}, -v{EB+5}, {vW1i}, v{EB+2}
v_fmac_f32 v{EB+3}, v{EB+5}, {vW1r}
v_and_b32 v{EB}, 0x1f0, {vL16}
v_add_u32 v{EB}, {CP}, v{EB}
v_lshrrev_b32 v{EB+1}, 9, {vL16}
v_lshl_add_u32 v{EB+1}, {sWV}, 6, v{EB+1}
v_lshl_add_u32 v{EB+1}, v{EB+1}, 3, v{EB}''')
        cp(f'v_mov_b32 {vTAG}, {sTAG}')
        cp(f'ds_write_b64 v{EB+1}, v[{EB+2}:{EB+3}]', tok='cpw')
        self.pre_bar[(2, 2)] = [waitl('cpw')]
        U0 = ACC[0] + 16
        rs = S()
        for k in range(4):
            rs(f'ds_read_b128 {q("v", U0 + 4*k)}, v{EB} offset:{512*k}')
        for st_ in (8, 4, 2):
            for k in range(st_):
                rs(f'v_add_f32 v{U0+k}, v{U0+k}, v{U0+k+st_}')
        rs(f'''
v_fmac_f32 {vPr}, v{U0}, {vMr}
v_fmac_f32 {vPi}, v{U0}, {vMi}
v_fma_f32 {vPr}, -v{U0+1}, {vMi}, {vPr}
v_fmac_f32 {vPi}, v{U0+1}, {vMr}''')
        for t in range(16):
            hr, hi = (vPr, vPi) if t == 0 else (f'v{SR+t-1}', f'v{SI+t-1}')
            rs(f'''
v_fma_f32 v{SR+t}, -{vLi}, {hi}, v{SR+t}
v_fmac_f32 v{SI+t}, {vLi}, {hr}
v_fmac_f32 v{SR+t}, {vLr}, {hr}
v_fmac_f32 v{SI+t}, {vLr}, {hi}''')
            if t & 1:
                k = t >> 1
                rs(f'v_cvt_pk_bf16_f32 v{U0+k}, v{SR+t-1}, v{SR+t}')
                rs(f'v_cvt_pk_bf16_f32 v{U0+8+k}, -v{SI+t-1}, -v{SI+t}')

        x = S()
        x(f"""
s_lshl_b32 {sT2}, {sWV}, 11
s_add_u32 {sT2}, {sT2}, {TB}
v_and_b32 {vW0r}, 0x1f0, {vL16}
v_lshlrev_b32 {vW0r}, 2, {vW0r}
v_lshrrev_b32 {vW1i}, 9, {vL16}
v_bfe_u32 {vW0i}, {vL16}, 5, 2
v_lshlrev_b32 v{EB+4}, 1, {vW1i}
v_xor_b32 {vW0i}, {vW0i}, v{EB+4}
v_lshl_add_u32 {vW0r}, {vW0i}, 4, {vW0r}
v_add_u32 {vW0r}, {sT2}, {vW0r}
v_xor_b32 {vW0i}, 16, {vW0r}
v_bfe_u32 {vW1r}, {vL16}, 6, 2
v_lshl_add_u32 {vW1r}, {vW1i}, 3, {vW1r}
v_bfe_u32 {vW1i}, {vL16}, 8, 1
v_lshl_add_u32 {vW1r}, {vW1r}, 1, {vW1i}
v_bfe_u32 {vW1i}, {vL16}, 4, 2
v_lshl_add_u32 {vW1r}, {vW1r}, 2, {vW1i}
v_lshl_add_u32 {vW1r}, {vW1r}, 3, {sT2}
v_bfe_u32 {vW1i}, {vL16}, 7, 1
v_lshlrev_b32 {vW1i}, 4, {vW1i}
v_xor_b32 {vW1r}, {vW1r}, {vW1i}
v_xor_b32 {vW1i}, 32, {vW1r}
s_lshl_b32 {sT2}, {sCG}, 12
s_add_u32 {sS}, {sSTB}, {sT2}
s_add_u32 {sS}, {sS}, {32*2048}""")
        adr = list(x)
        x = S()
        for m in range(2):
            for k in range(2):
                x(f'ds_write_b128 {vW0i if k else vW0r}, {q("v", U0 + 8*m + 4*k)}')
            for s_ in range(2):
                for t in range(2):
                    x(f'ds_read_b64_tr_b16 {q("v", SR + 8*m + 4*s_ + 2*t, 2)}, {vW1i if t else vW1r} offset:{s_*1024 + t*256}')
        tw = list(x)
        hst = []
        for s_ in range(4):
            x = S()
            if s_ == 2:
                x(f's_add_u32 {sS}, {sS}, 4096')
            x(f'buffer_store_dwordx4 {q("v", SR + 4*s_)}, {vL16}, {SRD_W}, {sS} offen offset:{(s_&1)*2048} sc1', tok='st1' if s_ == 3 else None)
            hst.append(list(x))
        b32 = aft(2) - 1
        gaps = weave_gaps(pass_gaps(2, 256), [
            (el, 0, 0), (epi, 1, b32 - 4), ([[waitv('eld')] + ec], b32 - 3, b32 - 3), (list(cp), b32 - 3, b32 - 1),
            (list(rs)[:4] + adr + list(rs)[4:], b32 + 1, 50), (tw, 51, 54), (hst, 56, 63)])
        gaps[63] += self.stamp('p4 start')
        GAPS += gaps
        SC.q0 += [self.flag_vm('st0', sFLA, 0, G3 + b32), self.flag_vm('st1', sFLA, 32), self.flag_vm('st2', sFLA, 64),
                  self.flag_vm('st3', sFL4, 96)]

        gaps = weave_gaps(pass_gaps(3, 256), [(self.ffn_epi(1, sSTB, 96 * 2048, 'st2'), 1, c.epi4)])
        gaps[63] += self.stamp('p4 end')
        GAPS += gaps
        GE = len(GAPS)
        gaps = chop([I('s_barrier')] + self.ffn_epi(0, sST4, 128 * 2048, 'st3'), 6)
        gaps[-1] += self.stamp('ph2 start')
        GAPS += gaps

        G5 = len(GAPS)
        vFL = f'v{EB}'
        first_use = {}
        for k in range(38):
            for nb in range(2):
                first_use.setdefault(b2frag(k, nb)[1], k)
        for t in range(19):
            er = 0 if t < 14 else GE if t < 16 else G5 + 8 * (t - 16) + 8
            SC.tiles.append((t, max(G2 + 2, er - c.tlead), er))
        SC.slot_avail = [(G2 + 2, 1), (G2 + 2, 2), (G2 + 2, 3), (G4 + 2, 0)]

        def poll(st_, earliest):
            s = self.fl_load(vFL)
            op = s.pop()
            op.tok = f'poll{st_}'
            return VM(op, pre=list(s), cost=20, w=0.3, lat=c.lat, earliest=earliest)
        stage_first = {0: 0, 8: 1, 24: 2, 32: 3}
        polls_at = {max(0, k - c.pollead): st_ for k, st_ in stage_first.items()}
        for k in range(38):
            if k in polls_at:
                SC.add(SC.q3, [poll(polls_at[k], G4 + c.poll0 if k == 0 else 0)])
            pre = []
            s = S()
            ad = None
            if k % 2 == 0:
                if k in stage_first:
                    st_ = stage_first[k]
                    ad = f'poll{st_}'
                    pre += [waitv(ad)] + self.fl_gate(vFL, st_)
                    kb, mul = {0: (0, 8), 8: (32, 16), 24: (96, 8), 32: (128, 6)}[k]
                    s(f's_mul_i32 {sA2}, {sWV}, {mul*2048}')
                    s(f's_add_u32 {sA2}, {sA2}, {sA2B}')
                    if kb:
                        s(f's_add_u32 {sA2}, {sA2}, {kb*2048}')
                elif k == 36:
                    s(f's_add_u32 {sA2}, {sA2}, 4096')
                    s(f's_cmp_eq_u32 {sWV}, 3')
                    s(f's_cselect_b32 {sA2}, {OOB}, {sA2}')
                else:
                    s(f's_add_u32 {sA2}, {sA2}, 4096')
            pre += list(s)
            e = G4 + 4 * k + 4 if k < 16 else G5 + 4 * (k - 16) + 4
            nd = (lambda k=k: all(t in SC.issued_tiles for t, u in first_use.items() if u <= k))
            for mb in range(2):
                op = I(f'buffer_load_dwordx4 {q("v", AB + 8*(k&15) + 4*mb)}, {vL16}, {SRD_W}, {sA2} offen offset:{(k&1)*2048 + mb*1024} {c.a2flags}', tok=f'a2_{k}')
                SC.add(SC.q3, [VM(op, pre=pre if mb == 0 else (), lat=c.lat, earliest=e, after_done=ad if mb == 0 else None, needs=nd)])
        acc2 = [[SR, SI], [ACC[1], ACC[1] + 16]]
        gaps = []
        for k in range(38):
            for mb in range(2):
                for nb in range(2):
                    d = acc2[mb][nb]
                    ar, t = b2frag(k, nb)
                    cin = '0' if k == 0 else q('v', d, 16)
                    gp = []
                    if mb == 0 and nb == 0:
                        gp.append(I('', pseudo='ahead', arg=[f'a2_{kk}' for kk in range(k, min(38, k + c.ahead))]))
                        gp.append(waitv(f'a2_{k}'))
                        if c.prof2 and k % 4 == 0:
                            gp += self.stamp(f'k{k}')
                    if mb == 0:
                        gp.append(needtile(t))
                    gp.append(I(f'v_mfma_f32_32x32x16_bf16 {q("v", d, 16)}, {q("v", AB + 8*(k&15) + 4*mb)}, {q("a", ar)}, {cin}'))
                    gaps.append(gp)
        F = ACC[0]
        E = S()
        E(f'''
v_lshrrev_b32 v{EB+1}, 8, {vL16}
v_and_b32 v{EB+2}, 1, v{EB+1}
v_lshrrev_b32 v{EB+1}, 1, v{EB+1}
v_lshl_add_u32 v{EB+3}, v{EB+2}, 2, v{EB+1}
s_lshl_b32 {sT2}, {sWV}, 4
v_add_u32 v{EB+3}, {sT2}, v{EB+3}
v_and_b32 v{EB+4}, 0xf0, {vL16}
s_lshl_b32 {sT2}, {sNT}, 8
v_add_u32 v{EB+5}, {sT2}, v{EB+4}
s_lshl_b32 {sT2}, {sMT}, 6
v_add_u32 v{EB+6}, {sT2}, v{EB+3}
v_lshl_add_u32 v14, v{EB+6}, 11, v{EB+5}
v_lshrrev_b32 v15, 1, v14
v_lshrrev_b32 v{EB+5}, 1, v{EB+5}
s_mov_b32 s18, 8192
s_mov_b32 s19, 4096
s_mov_b32 s20, 16384
s_mov_b32 s21, 20480''')
        E2 = S()
        for u in range(4):
            E2(f'buffer_load_dwordx2 {q("v", F + 16 + 2*u, 2)}, v15, {SRD_X}, {"s18" if u >> 1 else "0"} offen offset:{(u&1)*2048}')
        E2(f'global_load_dwordx2 v[16:17], v{EB+5}, s[32:33]')
        E3 = S()
        E3(f'''
v_and_b32 v{EB+6}, 127, v{EB+6}
v_lshlrev_b32 v{EB+6}, 3, v{EB+6}
v_add_u32 v{EB+6}, {ST}, v{EB+6}''')
        for u in range(4):
            E3(f'ds_read_b64 {q("v", F + 24 + 2*u, 2)}, v{EB+6} offset:{(8*(u>>1) + 2*(u&1))*8}')
        E3(f'''
v_and_b32 v22, 0x70, {vL16}
v_lshl_add_u32 v22, v{EB+2}, 7, v22
v_lshl_add_u32 v22, v{EB+1}, 8, v22
v_bfe_u32 v23, {vL16}, 7, 1
v_lshl_add_u32 v22, v23, 12, v22
s_lshr_b32 {sT2}, {sWV}, 1
s_lshl_b32 {sT2}, {sT2}, 13
s_and_b32 {sT3}, {sWV}, 1
s_lshl_b32 {sT3}, {sT3}, 11
s_add_u32 {sT2}, {sT2}, {sT3}
v_add_u32 v22, {sT2}, v22''')
        E4 = S()
        E4(f'''
v_lshlrev_b32 v18, 16, v16
v_and_b32 v19, {sMASK}, v16
v_lshlrev_b32 v20, 16, v17
v_and_b32 v21, {sMASK}, v17''')
        for u in range(4):
            for e in range(4):
                src = F + 16 + 2 * u + (e >> 1)
                d = F + 4 * u + e
                if e & 1:
                    E4(f'v_and_b32 v{d}, {sMASK}, v{src}')
                else:
                    E4(f'v_lshlrev_b32 v{d}, 16, v{src}')
                E4(f'v_fma_f32 {vX1}, v{d}, v{F+24+2*u}, v{F+25+2*u}')
                E4(f'v_fmac_f32 v{d}, {vX1}, v{18+e}')

        gaps = weave_gaps(gaps, [([list(E)], 8, 8), (list(E2), 10, 26), ([list(E3)], 28, 28), (list(E4), 70, 120)])
        GAPS += gaps
        SC.run(GAPS)
        assert not (SC.q0 or SC.q1 or SC.q3 or SC.tiles or SC.cur or SC.pend), (len(SC.q0), len(SC.q1), len(SC.q3))
        P += self.stamp('ph2 end')
        if c.verbose:
            print('  model end', M.t, 'stall', M.stall)

        P(f's_lshl_b32 m0, {sWV}, 14')
        for mb in range(2):
            for nb in range(2):
                for r in range(16):
                    P(f'ds_write_addtid_b32 v{acc2[mb][nb] + r} offset:{((mb*2+nb)*16 + r)*256}')
        P.append(waitl())
        P('s_barrier')
        for u in range(4):
            for p in range(4):
                P(f'ds_read_b128 {q("v", AB + 16*u + 4*p)}, v22 offset:{p*16384 + (4*(u>>1) + 2*(u&1))*256}')
        so = ['0', 's19', 's20', 's21']
        for u in range(4):
            b = AB + 16 * u
            for hh in range(2):
                P(f'v_pk_add_f32 {q("v", b+2*hh, 2)}, {q("v", b+2*hh, 2)}, {q("v", b+4+2*hh, 2)}')
                P(f'v_pk_add_f32 {q("v", b+8+2*hh, 2)}, {q("v", b+8+2*hh, 2)}, {q("v", b+12+2*hh, 2)}')
            for hh in range(2):
                P(f'v_pk_add_f32 {q("v", b+2*hh, 2)}, {q("v", b+2*hh, 2)}, {q("v", F+4*u+2*hh, 2)}')
            for hh in range(2):
                P(f'v_pk_add_f32 {q("v", b+2*hh, 2)}, {q("v", b+2*hh, 2)}, {q("v", b+8+2*hh, 2)}')
            P(f'buffer_store_dwordx4 {q("v", b)}, v14, {SRD_O}, {so[u]} offen {c.out_flags}')
        P(f'''
s_cmp_eq_u32 s2, 255
s_cselect_b32 {sT}, {EP}, {OOB}
s_mov_b64 exec, 1
buffer_store_dword {vTAG}, off, {SRD_W}, {sT} sc1
s_mov_b64 exec, -1''')
        if c.prof:
            P('s_waitcnt vmcnt(0)')
            P += self.stamp('end')
            P(f'''
s_memrealtime s[0:1]
s_waitcnt lgkmcnt(0)
v_writelane_b32 {self.vprof}, s0, 62
v_writelane_b32 {self.vprof}, {sSPIN}, 63
s_lshl_b32 {sT}, s2, 2
s_add_u32 {sT}, {sT}, {sWV}
s_lshl_b32 {sT}, {sT}, 8
s_add_u32 {sT}, {sT}, {PROF}
v_lshrrev_b32 {vT}, 2, {vL16}
buffer_store_dword {self.vprof}, {vT}, {SRD_W}, {sT} offen''')
        P.append(label('Lend'))
        P('s_endpgm')
        if c.ablate:
            import re as _re
            Q = []
            for ins in P:
                if ins.pseudo is None and _re.search(c.ablate, ins.text + ' #' + str(ins.tok)):
                    Q.append(I('s_nop 1' if ins.kind in ('dma', 'vld', 'vst') else 's_nop 0', tok=ins.tok))
                else:
                    Q.append(ins)
            P = Q
        body = self.finalize(P) + ''.join(self.slow)
        body += 'Lcode_end:\n'
        if c.align:
            body = align_fix(body)
        return body


def emit(cfg, path):
    ref = open('parallel_sum__ssm_conv_s5__geglu_ffn__prompt.s.ref').read()
    head = []
    for l in ref.split('\n'):
        if l.startswith(';') and '@launch' not in l:
            head.append(l)
        elif not l.startswith(';'):
            break
    g = Gen(cfg)
    body = g.build()
    txt = '\n'.join(head) + f'\n; @launch grid=(256,1,1) block=(256,1,1) lds={LDS_BYTES}\n'
    txt += f'''.amdgcn_target "amdgcn-amd-amdhsa--gfx950"
.text
.globl {KN}
.p2align 8
.type {KN},@function
{KN}:
{body}
.section .rodata,"a"
.p2align 6
.amdhsa_kernel {KN}
  .amdhsa_next_free_vgpr 512
  .amdhsa_next_free_sgpr 102
  .amdhsa_accum_offset 256
  .amdhsa_group_segment_fixed_size 0
  .amdhsa_kernarg_size 128
  .amdhsa_user_sgpr_count 2
  .amdhsa_user_sgpr_kernarg_segment_ptr 1
  .amdhsa_system_sgpr_workgroup_id_x 1
.end_amdhsa_kernel
'''
    open(path, 'w').write(txt)
    return g


if __name__ == '__main__':
    cfg = Cfg()
    for a in sys.argv[2:]:
        k, v = a.split('=', 1)
        cur = getattr(Cfg, k)
        setattr(cfg, k, v if isinstance(cur, str) else type(cur)(int(v)))
    g = emit(cfg, sys.argv[1])
    if cfg.prof:
        open(sys.argv[1] + '.stamps', 'w').write('\n'.join(g.stamp_names))
```

```python
KN = 'parallel_sum__ssm_conv_s5__geglu_ffn__prompt_kernel'
def desc(name, vg=64):
    return f""".section .rodata,"a"
.p2align 6
.amdhsa_kernel {name}
  .amdhsa_next_free_vgpr {vg}
  .amdhsa_next_free_sgpr 96
  .amdhsa_accum_offset {vg}
  .amdhsa_group_segment_fixed_size 0
  .amdhsa_kernarg_size 128
  .amdhsa_user_sgpr_count 2
  .amdhsa_user_sgpr_kernarg_segment_ptr 1
  .amdhsa_system_sgpr_workgroup_id_x 1
.end_amdhsa_kernel
"""
def kern(name, body):
    return f""".text
.globl {name}
.p2align 8
.type {name},@function
{name}:
{body}
  s_endpgm
""" + desc(name)
```

```python
import sys, re
from mklist_lib import *
base_path = sys.argv[1]
what = sys.argv[2:]
base = open(base_path).read()
m = re.search(r'; @launch (grid=\S+ block=\S+ lds=\d+)\n', base)
geo = m.group(1)
one = 'grid=(1,1,1) block=(64,1,1) lds=0'
def amp(kind):
    b = """  s_memrealtime s[40:41]
  s_cmp_ge_u32 s2, 1
  s_cbranch_scc1 amp_e
  s_load_dwordx2 s[4:5], s[0:1], 120
  s_waitcnt lgkmcnt(0)
  s_mov_b32 s8, s4
  s_mov_b32 s9, s5
  s_mov_b32 s10, 0x2000000
  s_mov_b32 s11, 0x20000
  v_lshlrev_b32 v1, 8, v0
  s_mov_b32 s12, 0x1000000
  v_mov_b32 v4, 0
  v_mov_b32 v5, -1
"""
    if kind == 'zero':
        k, ref = 60, 60
    elif kind == 'span':
        k, ref = 62, 61
    elif kind in ('post', 'pre', 'prezero'):
        k, ref = 62, 61
    elif kind == 'spread':
        k, ref = 61, 61
    else:
        k, ref = int(kind), 60
    for i in range(16):
        b += f"  buffer_load_dword v2, v1, s[8:11], s12 offen offset:{k*4}\n  buffer_load_dword v3, v1, s[8:11], s12 offen offset:{ref*4}\n  s_add_u32 s12, s12, 16384\n  s_waitcnt vmcnt(0)\n"
        if kind in ('span', 'spread', 'post', 'pre', 'prezero'):
            b += "  v_max_u32 v4, v4, v2\n  v_min_u32 v5, v5, v3\n"
        else:
            b += "  v_sub_u32 v2, v2, v3\n  v_add_u32 v4, v4, v2\n"
    b += "  s_mov_b32 s14, 0\n  s_mov_b32 s15, -1\n  s_nop 1\n"
    for l in range(64):
        b += f"  v_readlane_b32 s16, v4, {l}\n  v_readlane_b32 s17, v5, {l}\n  s_nop 1\n"
        if kind in ('span', 'spread', 'post', 'pre', 'prezero'):
            b += "  s_max_u32 s14, s14, s16\n  s_min_u32 s15, s15, s17\n"
        else:
            b += "  s_add_u32 s14, s14, s16\n"
    if kind == 'post':
        b += "  s_sub_u32 s14, s40, s14\n  s_lshl_b32 s14, s14, 2\n"
    elif kind in ('pre', 'prezero'):
        b += "  s_mov_b32 s12, 0x1800000\n  buffer_load_dword v2, off, s[8:11], s12\n  s_waitcnt vmcnt(0)\n  v_readfirstlane_b32 s16, v2\n  s_nop 1\n  s_sub_u32 s14, s15, s16\n  s_lshl_b32 s14, s14, 2\n"
        if kind == 'prezero': b += "  s_mov_b32 s14, 0\n"
    elif kind in ('span', 'spread'):
        b += "  s_sub_u32 s14, s14, s15\n  s_lshl_b32 s14, s14, 1\n"
    else:
        b += "  s_lshr_b32 s14, s14, 10\n  s_mul_i32 s14, s14, 6554\n  s_lshr_b32 s14, s14, 16\n"
    b += """  s_min_u32 s14, s14, 20000
  s_memrealtime s[20:21]
  s_waitcnt lgkmcnt(0)
amp_l:
  s_memrealtime s[22:23]
  s_waitcnt lgkmcnt(0)
  s_sub_u32 s24, s22, s20
  s_cmp_lt_u32 s24, s14
  s_cbranch_scc1 amp_l
amp_e:"""
    return kern('amp_kernel', b)
for w in what:
    lines = f'; @launch kernel={KN} {geo}\n; @launch kernel=amp_kernel {one}\n'
    extra = ''
    if w.startswith('pre'):
        lines = f'; @launch kernel=lead_kernel {one}\n' + lines
        extra = kern('lead_kernel', """  s_memrealtime s[20:21]
  s_cmp_ge_u32 s2, 1
  s_cbranch_scc1 lead_e
  s_load_dwordx2 s[4:5], s[0:1], 120
  s_waitcnt lgkmcnt(0)
  s_mov_b32 s8, s4
  s_mov_b32 s9, s5
  s_mov_b32 s10, 0x2000000
  s_mov_b32 s11, 0x20000
  s_mov_b32 s12, 0x1800000
  v_mov_b32 v1, s20
  buffer_store_dword v1, off, s[8:11], s12
lead_e:""")
    open(f'A_{w}.s', 'w').write(base.replace(m.group(0), lines) + amp(w) + extra)
```
